```python
import torch

def _softmax(x, axis=-1):
    return torch.softmax(x, dim=axis)
def _gelu(x):
    return torch.nn.functional.gelu(x, approximate="tanh")
def _silu(x):
    return torch.nn.functional.silu(x)
def _sigmoid(x):
    return torch.sigmoid(x)
def _layernorm(x, axis=-1, eps=1e-5):
    m = x.mean(dim=axis, keepdim=True)
    v = x.var(dim=axis, keepdim=True, unbiased=False)
    return (x - m) / torch.sqrt(v + eps)
def _scatter_add(tgt, idx, src, axis=0):
    return tgt.clone().index_add_(axis, idx, src)
def _segment_sum(src, seg, n):
    out = torch.zeros((n,) + src.shape[1:], dtype=src.dtype)
    return out.index_add_(0, seg, src)
def _pad(x, pw):
    flat = tuple(v for pair in reversed(pw) for v in pair)
    return torch.nn.functional.pad(x, flat)

kernel_name = 'gated_mix__ssm_conv_s4__glu_gated_bilinear__prompt'

def setup_inputs():

    _w = (lambda a: (lambda t: t.to(torch.bfloat16) if t.is_floating_point() else t)(torch.as_tensor(a)))
    def _A_setup():
        B, L, D, N = 1, 2048, 640, 128
        A_re = -(lambda _x: torch.exp(torch.as_tensor(_x)))((lambda *s: torch.randn(*s, dtype=torch.bfloat16) * 3.2)(D, N))
        A_im = torch.pi * (lambda *s: torch.randn(*s, dtype=torch.bfloat16) * 0.05)(D, N)
        B_re = (lambda *s: torch.randn(*s, dtype=torch.bfloat16) * 0.1)(D, N)
        B_im = (lambda *s: torch.randn(*s, dtype=torch.bfloat16) * 0.1)(D, N)
        C_re = (lambda *s: torch.randn(*s, dtype=torch.bfloat16) * 0.1)(D, N)
        C_im = (lambda *s: torch.randn(*s, dtype=torch.bfloat16) * 0.1)(D, N)
        log_dt = (lambda *s: torch.randn(*s, dtype=torch.bfloat16) * 0.05)(D) * 0.5 - 4.0
        Dskip = (lambda *s: torch.randn(*s, dtype=torch.bfloat16) * 0.05)(D)
        return {
            "u": _w((lambda *s: torch.randn(*s, dtype=torch.bfloat16) * 0.05)(B, L, D)),
            "A_re": _w(A_re),
            "A_im": _w(A_im),
            "B_re": _w(B_re),
            "B_im": _w(B_im),
            "C_re": _w(C_re),
            "C_im": _w(C_im),
            "log_dt": _w(log_dt),
            "Dskip": _w(Dskip),
        }
    _A_in = _A_setup()

    def _B_setup():
        B, S, D, F = 1, 2048, 640, 1728
        return {
            "x": _w((lambda *s: torch.randn(*s, dtype=torch.bfloat16) * 0.05)(B, S, D)),
            "w_gate": _w((lambda *s: torch.randn(*s, dtype=torch.bfloat16) * 0.8)(D, F) * (D ** -0.5)),
            "w_up": _w((lambda *s: torch.randn(*s, dtype=torch.bfloat16) * 0.8)(D, F) * (D ** -0.5)),
            "w_down": _w((lambda *s: torch.randn(*s, dtype=torch.bfloat16) * 0.8)(F, D) * (F ** -0.5)),
        }
    _B_in = _B_setup()

    return {
        "A_u": _A_in["u"],
        "A_A_re": _A_in["A_re"],
        "A_A_im": _A_in["A_im"],
        "A_B_re": _A_in["B_re"],
        "A_B_im": _A_in["B_im"],
        "A_C_re": _A_in["C_re"],
        "A_C_im": _A_in["C_im"],
        "A_log_dt": _A_in["log_dt"],
        "A_Dskip": _A_in["Dskip"],
        "B_x": _B_in["x"],
        "B_w_gate": _B_in["w_gate"],
        "B_w_up": _B_in["w_up"],
        "B_w_down": _B_in["w_down"],
        "gate_w": _w((lambda *s: torch.randn(*s, dtype=torch.bfloat16) * 0.05)(640) * 16.0),
    }

def reference(A_u, A_A_re, A_A_im, A_B_re, A_B_im, A_C_re, A_C_im, A_log_dt, A_Dskip, B_x, B_w_gate, B_w_up, B_w_down, gate_w):
    def _A_ref(u, A_re, A_im, B_re, B_im, C_re, C_im, log_dt, Dskip):
        Bsz, L, D = u.shape
        dt = torch.exp(log_dt)[:, None]
        A = A_re + 1j * A_im
        Bc = B_re + 1j * B_im
        Cc = C_re + 1j * C_im
        logdA = dt * A
        dB = dt * Bc
        l = (lambda x, dt: x.to(dt))(torch.arange(L), A_re.dtype)
        P = torch.exp(logdA[:, :, None] * l[None, None, :])
        K = torch.einsum("dn,dnl,dn->dl", Cc, P, dB).real
        L2 = 2 * L
        Kp = _pad(K, ((0, 0), (0, L)))
        up = (lambda x, *d: x.permute(*d))(u, 0, 2, 1)
        up = _pad(up, ((0, 0), (0, 0), (0, L)))
        Kf = (lambda x, axes=(-2,-1): torch.fft.rfft2(x.float(), dim=axes))(Kp[:, None, :], axes=(-2, -1))
        Uf = (lambda x, axes=(-2,-1): torch.fft.rfft2(x.float(), dim=axes))(up[:, :, None, :], axes=(-2, -1))
        Yf = Uf * Kf[None, :, :, :]
        y = (lambda x, s, axes=(-2,-1): torch.fft.irfft2(x, s=s, dim=axes).to(torch.bfloat16))(Yf, (1, L2), axes=(-2, -1))[:, :, 0, :L]
        y = (lambda x, *d: x.permute(*d))(y, 0, 2, 1) + u * Dskip[None, None, :]
        return y

    def _B_ref(x, w_gate, w_up, w_down):
        g = torch.einsum("bsd,df->bsf", x, w_gate)
        u = torch.einsum("bsd,df->bsf", x, w_up)
        h = g * u
        return torch.einsum("bsf,fd->bsd", h, w_down)

    x = A_u
    g = _sigmoid((x * gate_w).sum(-1, keepdims=True))
    a = _A_ref(x, A_A_re, A_A_im, A_B_re, A_B_im, A_C_re, A_C_im, A_log_dt, A_Dskip)
    b = _B_ref(x, B_w_gate, B_w_up, B_w_down)
    return g * a + (1 - g) * b
```

```python
import re

TRANS = ('v_exp_f32', 'v_log_f32', 'v_rcp_f32', 'v_rsq_f32', 'v_sqrt_f32', 'v_sin_f32', 'v_cos_f32')
REG_RE = re.compile(r'^-?\|?([vsa])(\d+)\|?$')
RNG_RE = re.compile(r'^-?\|?([vsa])\[(\d+):(\d+)\]\|?$')


def regs_of(tok):
    tok = tok.strip()
    m = REG_RE.match(tok)
    if m:
        return {(m.group(1), int(m.group(2)))}
    m = RNG_RE.match(tok)
    if m:
        return {(m.group(1), i) for i in range(int(m.group(2)), int(m.group(3)) + 1)}
    if tok == 'vcc':
        return {('s', 'vcc')}
    if tok == 'exec':
        return {('s', 'exec')}
    if tok == 'm0':
        return {('s', 'm0')}
    return set()


class Ins:
    __slots__ = ('text', 'op', 'kind', 'w', 'r', 'a', 'b', 'c', 'passes', 'dpp', 'wide', 'lds', 'label', 'target', 'states', 'opsel')

    def __init__(self, text):
        self.text = text
        self.label = None
        self.target = None
        self.kind = 'other'
        self.w = set(); self.r = set(); self.a = set(); self.b = set(); self.c = set()
        self.passes = 0; self.dpp = False; self.wide = False; self.lds = False; self.opsel = False
        self.states = 1
        t = text.split(';')[0].strip()
        if not t:
            self.kind = 'empty'; self.states = 0; self.op = ''
            return
        if t.endswith(':'):
            self.kind = 'label'; self.label = t[:-1]; self.states = 0; self.op = ''
            return
        if t.startswith('.'):
            self.kind = 'empty'; self.states = 0; self.op = ''
            return
        parts = t.split(None, 1)
        op = parts[0]; self.op = op
        rest = parts[1] if len(parts) > 1 else ''
        ops = [x.strip() for x in rest.split(',')]
        toks = []
        mods = ''
        for i, o in enumerate(ops):
            sp = o.split()
            if not sp:
                continue
            toks.append(sp[0])
            mods += ' ' + ' '.join(sp[1:])
        R = [regs_of(x) for x in toks]
        U = lambda l: set().union(*l) if l else set()
        if op == 's_nop':
            self.states = int(toks[0], 0) + 1; self.kind = 'nop'
        elif op.startswith('s_cbranch') or op == 's_branch':
            self.kind = 'branch'; self.target = toks[0]
        elif op.startswith('v_mfma'):
            self.kind = 'mfma'
            self.passes = 8 if '32x32x16' in op else 4
            assert '32x32x16' in op or '16x16x32' in op, op
            self.w = R[0]; self.a = R[1]; self.b = R[2]; self.c = R[3]
            self.r = R[1] | R[2] | R[3]
        elif op.startswith('v_'):
            self.kind = 'trans' if op.startswith(TRANS) else 'valu'
            self.w = set(R[0]); self.r = U(R[1:])
            if op.startswith(('v_fmac', 'v_mac', 'v_dot2c', 'v_writelane', 'v_pk_fmac')):
                self.r |= R[0]
            if op.startswith('v_dot'):
                self.kind = 'dot'
            if op.startswith('v_permlane'):
                self.kind = 'perm'; self.w = R[0] | R[1]; self.r = R[0] | R[1]
            if op.startswith(('v_readfirstlane', 'v_readlane')):
                self.kind = 'rdlane'
            if op.startswith(('v_add_co', 'v_sub_co', 'v_addc_co', 'v_subb_co')):
                self.w |= R[1]; self.r = U(R[2:])
            if op.startswith('v_cmpx'):
                raise Exception('avoid v_cmpx')
            if any(k in mods for k in ('row_', 'quad_perm', 'wave_')):
                self.dpp = True; self.r |= R[0]
            if 'dst_sel' in mods or ('op_sel' in mods and not op.startswith('v_pk')):
                self.opsel = True
        elif op.startswith('ds_'):
            if op.startswith(('ds_read', 'ds_bpermute', 'ds_permute', 'ds_swizzle')) or '_rtn' in op:
                self.kind = 'ld'; self.w = R[0]; self.r = U(R[1:])
            else:
                self.kind = 'st'; self.r = U(R)
        elif op.startswith(('buffer_', 'global_')):
            self.lds = ' lds' in (' ' + mods + ' ') or op.startswith('global_load_lds')
            if op.startswith(('buffer_load', 'global_load')):
                if self.lds:
                    self.kind = 'vm'; self.r = U(R) | {('s', 'm0')}
                else:
                    self.kind = 'vm'; self.w = R[0]; self.r = U(R[1:])
            elif op.startswith(('buffer_store', 'global_store')):
                self.kind = 'vm'; self.r = U(R)
                if op.endswith(('x3', 'x4')):
                    self.wide = True
                    self.c = R[0] if op.startswith('buffer') else R[1]
            elif 'atomic' in op:
                self.kind = 'vm'; self.r = U(R)
                if 'sc0' in mods:
                    self.w = R[0]
            else:
                self.kind = 'vm'
        elif op.startswith('s_'):
            self.kind = 'salu'
            if op.startswith(('s_cmp', 's_waitcnt', 's_barrier', 's_endpgm', 's_sleep', 's_setprio', 's_bitcmp')):
                self.r = U(R)
            else:
                self.w = set(R[0]) if R else set(); self.r = U(R[1:])
                if 'saveexec' in op:
                    self.w |= {('s', 'exec')}
        else:
            raise Exception('unknown op ' + text)


VALU_KINDS = ('valu', 'trans', 'dot', 'perm', 'rdlane')


def required(p, c):
    need = 0
    pv = {x for x in p.w if x[0] in 'va'}
    ps = {x for x in p.w if x[0] == 's'}
    if p.kind == 'mfma':
        big = 12 if p.passes == 8 else 8
        if c.kind == 'mfma':
            if pv & (c.a | c.b):
                need = max(need, big)
            if pv & c.c and not (pv == c.c and p.passes == c.passes):
                need = max(need, big - 2)
            if pv & c.w and not (pv == c.c and p.passes == c.passes):
                need = max(need, big)
        elif c.kind in VALU_KINDS or c.kind in ('ld', 'st', 'vm'):
            if pv & (c.r | c.w):
                need = max(need, big)
        if c.kind in VALU_KINDS and p.c & c.w:
            need = max(need, 7 if p.passes == 8 else 3)
    if p.kind in VALU_KINDS:
        if c.kind == 'mfma' and pv & c.r:
            need = max(need, 2)
        if c.kind == 'rdlane' and pv & c.r:
            need = max(need, 1)
        if (c.kind == 'perm' or c.dpp) and pv & c.r:
            need = max(need, 2)
        if p.kind == 'trans' and c.kind in VALU_KINDS and c.kind != 'trans' and pv & c.r:
            need = max(need, 1)
        if p.kind == 'trans' and c.kind == 'trans' and pv & c.r:
            need = max(need, 1)
        if p.opsel and c.kind in VALU_KINDS and pv & (c.r | c.w):
            need = max(need, 1)
        if p.kind == 'dot' and (c.kind in VALU_KINDS or c.kind in ('st', 'vm', 'ld', 'mfma')) and pv & (c.r | c.w):
            if not (c.op == p.op and c.w == p.w and not (pv & (c.r - c.w))):
                need = max(need, 3)
        if ps:
            if c.kind in VALU_KINDS and ps & c.r:
                need = max(need, 4 if c.op.startswith(('v_readlane', 'v_writelane')) else 2)
            if c.kind == 'vm' and ps & c.r:
                need = max(need, 5)
            if c.kind in ('salu', 'branch') and (ps & c.r or (c.kind == 'branch' and 'vcc' in c.op and ('s', 'vcc') in ps)):
                need = max(need, 1)
    if p.kind == 'salu' and ('s', 'm0') in p.w:
        if (c.kind == 'vm' and c.lds) or 'addtid' in c.op:
            need = max(need, 1)
    if p.wide and p.c & c.w:
        need = max(need, 2 if c.kind in VALU_KINDS or c.kind == 'mfma' else 1)
    return need


def pad_hazards(lines):
    ins = [Ins(l) for l in lines]
    out = []
    sites = {}
    for i, x in enumerate(ins):
        if x.kind == 'branch':
            sites.setdefault(x.target, []).append(i)
    pos_in_out = {}
    MAXD = 13

    def scan_top(c):
        return scan2(out, len(out) - 1, 0, c, 0, False)

    def scan2(seq, j, dist, c, depth, entered):
        need = 0
        first = entered
        while j >= 0 and dist < MAXD:
            p = seq[j]
            if p.kind == 'label':
                if depth < 3:
                    for s in sites.get(p.label, []):
                        if s in pos_in_out:
                            need = max(need, scan2(out, pos_in_out[s], dist, c, depth + 1, True))
                        else:
                            need = max(need, scan2(ins, s, dist, c, depth + 1, True))
            elif p.kind != 'empty':
                if p.op in ('s_branch', 's_endpgm') and not first:
                    return need
                r = required(p, c)
                if r > dist:
                    need = max(need, r - dist)
                dist += p.states
                first = False
            j -= 1
        return need

    for i, c in enumerate(ins):
        if c.kind not in ('label', 'empty', 'nop'):
            n = scan_top(c)
            while n > 0:
                k = min(n, 8)
                out.append(Ins('s_nop %d' % (k - 1)))
                n -= k
        pos_in_out[i] = len(out)
        out.append(c)
    return [x.text for x in out]


class Asm:
    def __init__(self):
        self.lines = []

    def __call__(self, s):
        for l in s.split('\n'):
            l = l.strip()
            if l:
                self.lines.append(l)

    def label(self, n):
        self.lines.append(n + ':')

    def extend(self, other):
        self.lines.extend(other.lines if isinstance(other, Asm) else other)


def v(a, n=1):
    return 'v%d' % a if n == 1 else 'v[%d:%d]' % (a, a + n - 1)


def s(a, n=1):
    return 's%d' % a if n == 1 else 's[%d:%d]' % (a, a + n - 1)


def interleave(main, fill, start=0, end=None):
    end = len(main) if end is None else end
    n = end - start
    out = []
    k = 0
    for i, m in enumerate(main):
        out.append(m)
        if start <= i < end:
            tgt = (len(fill) * (i - start + 1) + n - 1) // n
            while k < tgt:
                out.append(fill[k]); k += 1
    out.extend(fill[k:])
    return out


def kernel_text(name, body_lines, vgpr=256, sgpr=102):
    body = pad_hazards(body_lines)
    t = '.text\n.globl %s\n.p2align 8\n.type %s,@function\n%s:\n' % (name, name, name)
    for l in body:
        t += (l if l.endswith(':') else '    ' + l) + '\n'
    acc = min(256, (vgpr + 3) // 4 * 4)
    t += '''.section .rodata,"a"
.p2align 6
.amdhsa_kernel %s
  .amdhsa_next_free_vgpr %d
  .amdhsa_next_free_sgpr %d
  .amdhsa_accum_offset %d
  .amdhsa_group_segment_fixed_size 0
  .amdhsa_kernarg_size 136
  .amdhsa_user_sgpr_count 2
  .amdhsa_user_sgpr_kernarg_segment_ptr 1
  .amdhsa_system_sgpr_workgroup_id_x 1
.end_amdhsa_kernel
''' % (name, vgpr, sgpr, acc)
    return t
```

```python
from asmlib import *
WS_H = 0
WS_AT = 0x700000
WS_G = 0xA00000
WS_CNT = 0xA10000
WS_STAMP = 0xB00000
WS_UT = 0xC00000
WS_SIZE = 0x1000000
X_BYTES = 2048 * 1280
W_BYTES = 640 * 3456
NAME = 'gated_mix__ssm_conv_s4__glu_gated_bilinear__prompt'


def srd(a, d, p, nbytes, off=0):
    if off:
        a(f's_add_u32 {s(d)}, {s(p)}, {hex(off)}')
        a(f's_addc_u32 {s(d+1)}, {s(p+1)}, 0')
    else:
        a(f's_mov_b32 {s(d)}, {s(p)}')
        a(f's_mov_b32 {s(d+1)}, {s(p+1)}')
    a(f's_mov_b32 {s(d+2)}, {hex(nbytes)}')
    a(f's_mov_b32 {s(d+3)}, 0x20000')


def stamp(a, srd_ws, slot, s_wg, s_wave, vt, kidx=0):
    a('s_memrealtime s[4:5]')
    a('s_waitcnt lgkmcnt(0)')
    a(f'v_mov_b32 {v(vt)}, s4')
    a('s_memtime s[4:5]')
    a('s_waitcnt lgkmcnt(0)')
    a(f'v_mov_b32 {v(vt+1)}, s4')
    a(f's_lshl_b32 s3, {s(s_wg)}, 3')
    a(f's_add_u32 s3, s3, {s(s_wave)}')
    a(f's_lshl_b32 s3, s3, 7')
    a(f's_add_u32 s3, s3, {hex(WS_STAMP + kidx*0x40000 + slot*8)}')
    a(f'v_mov_b32 {v(vt+2)}, s3')
    a('s_mov_b64 s[4:5], exec')
    a('s_mov_b64 exec, 1')
    a(f'buffer_store_dwordx2 {v(vt,2)}, {v(vt+2)}, {s(srd_ws,4)}, 0 offen')
    a('s_mov_b64 exec, s[4:5]')
```

```python
from common import *

G1_STAGE = 24576
G1_NST = 4
G1_LDS = G1_STAGE * G1_NST


def g1_map(a, s_rowblk, s_ct):
    a('s_and_b32 s3, s2, 7')
    a('s_lshr_b32 s4, s3, 1')
    a('s_mul_i32 s4, s4, 27')
    a('s_lshr_b32 s5, s2, 3')
    a('s_add_u32 s4, s4, s5')
    a(f's_lshr_b32 {s(s_ct)}, s4, 2')
    a('s_and_b32 s4, s4, 3')
    a('s_and_b32 s3, s3, 1')
    a('s_lshl_b32 s3, s3, 2')
    a(f's_add_u32 {s(s_rowblk)}, s3, s4')


def g1_loader(a, which, s_rowblk, s_ct, vlane, SX, SG, SU, vb=4, lds0=0):
    t = vb + 12
    a(f'v_lshrrev_b32 {v(t)}, 2, {v(vlane)}')
    a(f's_lshl_b32 s3, {s(s_rowblk)}, 8')
    if which:
        a('s_add_u32 s3, s3, 192')
    a(f'v_add_u32 {v(t)}, s3, {v(t)}')
    a(f'v_mul_u32_u24 {v(t)}, 1280, {v(t)}')
    a(f'v_lshrrev_b32 {v(t+1)}, 4, {v(vlane)}')
    a(f'v_xor_b32 {v(t+1)}, {v(t+1)}, {v(vlane)}')
    a(f'v_and_b32 {v(t+1)}, 3, {v(t+1)}')
    a(f'v_lshl_add_u32 {v(t)}, {v(t+1)}, 4, {v(t)}')
    nx = 4 if which else 12
    for i in range(nx):
        a(f'v_add_u32 {v(vb+i)}, {i*16*1280-(i&3)*1024}, {v(t)}')
    if which:
        a(f'v_lshrrev_b32 {v(t)}, 3, {v(vlane)}')
        a(f'v_mul_u32_u24 {v(t)}, 3456, {v(t)}')
        a(f'v_lshrrev_b32 {v(t+1)}, 2, {v(vlane)}')
        a(f'v_and_b32 {v(t+1)}, 4, {v(t+1)}')
        a(f'v_xor_b32 {v(t+1)}, {v(t+1)}, {v(vlane)}')
        a(f'v_and_b32 {v(t+1)}, 7, {v(t+1)}')
        a(f'v_lshl_add_u32 {v(t)}, {v(t+1)}, 4, {v(t)}')
        a(f's_lshl_b32 s3, {s(s_ct)}, 7')
        a(f'v_add_u32 {v(t)}, s3, {v(t)}')
        for i in range(4):
            a(f'v_add_u32 {v(vb+4+i)}, {i*(8*3456-1024)}, {v(t)}')

    def issue(st):
        base = lds0 + (st % G1_NST) * G1_STAGE
        a(f's_mov_b32 s4, {st*64}')
        if which:
            a(f's_mov_b32 s5, {st*32*3456}')
            groups = [(16384, SG, 4, 5), (20480, SU, 4, 5), (12288, SX, 0, 4)]
        else:
            groups = [(0, SX, 0, 4), (4096, SX, 4, 4), (8192, SX, 8, 4)]
        for off, sr, vo, so in groups:
            a(f's_mov_b32 m0, {base+off}')
            for i in range(4):
                a(f'buffer_load_dwordx4 {v(vb+vo+i)}, {s(sr,4)}, {s(so)} offen offset:{i*1024} lds')
    for st in range(3):
        issue(st)
    for i in range(20):
        a(f's_waitcnt vmcnt({12*(min(i+2,19)-i)})')
        a('s_barrier')
        if i + 3 < 20:
            issue(i + 3)


class G1Regs:
    def __init__(self, base):
        b = base
        self.xa = b; b += 4
        self.wa = b; b += 2
        self.ha = b; b += 1
        self.t = b; b += 3
        b = (b + 3) // 4 * 4
        self.X = [b, b + 16]; b += 32
        self.W = [b, b + 8]; b += 16
        self.acc = b; b += 128
        self.end = b


def g1_addr(a, R, s_wave, vlane, lds0=0):
    t = R.t
    a(f'v_and_b32 {v(t)}, 31, {v(vlane)}')
    a(f'v_lshrrev_b32 {v(t+1)}, 5, {v(vlane)}')
    a(f'v_bfe_u32 {v(t+2)}, {v(vlane)}, 2, 2')
    a(f'v_xor_b32 {v(t+1)}, {v(t+1)}, {v(t+2)}')
    a(f'v_lshlrev_b32 {v(t+1)}, 4, {v(t+1)}')
    a(f'v_lshl_add_u32 {v(t)}, {v(t)}, 6, {v(t+1)}')
    a(f's_and_b32 s3, {s(s_wave)}, 1')
    a('s_lshl_b32 s3, s3, 13')
    if lds0:
        a(f's_add_u32 s3, s3, {lds0}')
    a(f'v_add_u32 {v(R.xa)}, s3, {v(t)}')
    a(f'v_xor_b32 {v(R.xa+1)}, 32, {v(R.xa)}')
    a(f'v_add_u32 {v(R.xa+2)}, {2*G1_STAGE}, {v(R.xa)}')
    a(f'v_add_u32 {v(R.xa+3)}, {2*G1_STAGE}, {v(R.xa+1)}')
    a(f'v_lshrrev_b32 {v(t)}, 5, {v(vlane)}')
    a(f'v_lshl_add_u32 {v(t)}, {v(t)}, 3, {v(t+2)}')
    a(f'v_lshlrev_b32 {v(t)}, 7, {v(t)}')
    a(f'v_lshrrev_b32 {v(t+2)}, 1, {v(t+2)}')
    a(f's_lshr_b32 s3, {s(s_wave)}, 1')
    a(f'v_xor_b32 {v(t+2)}, s3, {v(t+2)}')
    a(f'v_lshl_add_u32 {v(t)}, {v(t+2)}, 6, {v(t)}')
    a(f'v_bfe_u32 {v(t+1)}, {v(vlane)}, 4, 1')
    a(f'v_lshl_add_u32 {v(t)}, {v(t+1)}, 5, {v(t)}')
    a(f'v_and_b32 {v(t+2)}, 3, {v(vlane)}')
    a(f'v_lshl_add_u32 {v(t)}, {v(t+2)}, 3, {v(t)}')
    a(f'v_add_u32 {v(R.wa)}, {16384+lds0}, {v(t)}')
    a(f'v_add_u32 {v(R.wa+1)}, {2*G1_STAGE}, {v(R.wa)}')
    a(f'v_lshlrev_b32 {v(t+1)}, 10, {v(t+1)}')
    a(f'v_lshrrev_b32 {v(t)}, 5, {v(vlane)}')
    a(f'v_lshl_add_u32 {v(t+1)}, {v(t)}, 8, {v(t+1)}')
    a(f'v_and_b32 {v(t)}, 15, {v(vlane)}')
    a(f'v_lshl_add_u32 {v(R.ha)}, {v(t)}, 4, {v(t+1)}')


def g1_reads(R, st, sub, buf):
    slot = st % G1_NST
    hi, so = slot >> 1, (slot & 1) * G1_STAGE
    tr = [f'ds_read_b64_tr_b16 {v(R.W[buf]+4*m+2*h,2)}, {v(R.wa+hi)} offset:{so+m*4096+sub*2048+h*512}'
          for m in range(2) for h in range(2)]
    xr = [f'ds_read_b128 {v(R.X[buf]+4*r,4)}, {v(R.xa+2*hi+sub)} offset:{so+r*2048}' for r in range(4)]
    return [[tr[0], tr[1], xr[0]], [tr[2], tr[3], xr[1]], [xr[2], xr[3]]]


def g1_mfmas(R, buf, first):
    M = []
    for r in range(4):
        for m in range(2):
            acc = R.acc + 64 * m + 16 * r
            cc = '0' if first else v(acc, 16)
            M.append(f'v_mfma_f32_32x32x16_bf16 {v(acc,16)}, {v(R.W[buf]+4*m,4)}, {v(R.X[buf]+4*r,4)}, {cc}')
    return M


def g1_main(a, R):
    a('s_barrier')
    for g in g1_reads(R, 0, 0, 0):
        a.extend(g)
    for st in range(20):
        for sub in range(2):
            M = g1_mfmas(R, sub, st == 0 and sub == 0)
            nxt = (st, 1) if sub == 0 else (st + 1, 0)
            a('s_waitcnt lgkmcnt(0)')
            a(M[0])
            rd = g1_reads(R, nxt[0], nxt[1], sub ^ 1) if nxt[0] < 20 else [[], [], []]
            if sub == 1 and nxt[0] < 20:
                a('s_barrier')
            for j in range(1, 8):
                if j - 1 < 3:
                    a.extend(rd[j - 1])
                a(M[j])


def g1_epilogue(a, R, s_rowblk, s_ct, s_wave, SH, flags=''):
    a(f's_and_b32 s3, {s(s_wave)}, 1')
    a(f's_lshl_b32 s4, {s(s_rowblk)}, 1')
    a('s_add_u32 s3, s3, s4')
    a('s_mul_i32 s3, s3, 108')
    a(f's_lshl_b32 s4, {s(s_ct)}, 1')
    a('s_add_u32 s3, s3, s4')
    a(f's_lshr_b32 s4, {s(s_wave)}, 1')
    a('s_add_u32 s3, s3, s4')
    a('s_lshl_b32 s4, s3, 12')
    a(f's_add_u32 s5, s4, {54*4096}')
    for r in range(4):
        g, u = R.acc + 16 * r, R.acc + 64 + 16 * r
        p = R.X[0] + 8 * r
        for i in range(16):
            a(f'v_mul_f32 {v(g+i)}, {v(g+i)}, {v(u+i)}')
            if i & 1:
                a(f'v_cvt_pk_bf16_f32 {v(p+i//2)}, {v(g+i-1)}, {v(g+i)}')
            if i == 7 or i == 15:
                o = (r & 1) * 2048 + (i // 8) * 512
                a(f'buffer_store_dwordx4 {v(p+(i//8)*4,4)}, {v(R.ha)}, {s(SH,4)}, {s(4+(r>>1))} offen offset:{o}{flags}')


def gate_wave(a, s_rowblk, s_ct, vlane, SX, s_gw, SGOUT, vb=4, flags=''):
    t = vb; gw = vb + 4; xr = vb + 24; acc = vb + 104
    a(f'v_and_b32 {v(t)}, 15, {v(vlane)}')
    a(f'v_lshlrev_b32 {v(t)}, 4, {v(t)}')
    for i in range(5):
        a(f'global_load_dwordx4 {v(gw+4*i,4)}, {v(t)}, {s(s_gw,2)} offset:{256*i}')
    a(f's_lshl_b32 s3, {s(s_rowblk)}, 4')
    a(f's_add_u32 s3, s3, {s(s_ct)}')
    a('s_lshl_b32 s3, s3, 4')
    a(f'v_lshrrev_b32 {v(t+1)}, 4, {v(vlane)}')
    a(f'v_add_u32 {v(t+1)}, s3, {v(t+1)}')
    a(f'v_mul_u32_u24 {v(t+2)}, 1280, {v(t+1)}')
    a(f'v_add_u32 {v(t+2)}, {v(t+2)}, {v(t)}')
    for p in range(4):
        a(f's_mov_b32 s4, {p*4*1280}')
        for i in range(5):
            a(f'buffer_load_dwordx4 {v(xr+20*p+4*i,4)}, {v(t+2)}, {s(SX,4)}, s4 offen offset:{256*i}')
    a(f'v_lshlrev_b32 {v(t+1)}, 2, {v(t+1)}')
    part2 = Asm()
    b = part2
    for p in range(4):
        b(f'v_mov_b32 {v(acc+p)}, 0')
    for p in range(4):
        b(f's_waitcnt vmcnt({15-5*p})')
        for i in range(20):
            b(f'v_dot2c_f32_bf16 {v(acc+p)}, {v(xr+20*p+i)}, {v(gw+i)}')
    for sh in (8, 4, 2, 1):
        for p in range(4):
            b(f'v_add_f32_dpp {v(acc+p)}, {v(acc+p)}, {v(acc+p)} row_ror:{sh} row_mask:0xf bank_mask:0xf')
    for p in range(4):
        b(f'v_mul_f32 {v(acc+p)}, 0xbfb8aa3b, {v(acc+p)}')
    for p in range(4):
        b(f'v_exp_f32 {v(acc+p)}, {v(acc+p)}')
    for p in range(4):
        b(f'v_add_f32 {v(acc+p)}, 1.0, {v(acc+p)}')
    for p in range(4):
        b(f'v_rcp_f32 {v(acc+p)}, {v(acc+p)}')
    b(f'v_and_b32 {v(t)}, 15, {v(vlane)}')
    b(f'v_cmp_eq_u32 vcc, 0, {v(t)}')
    b('s_and_saveexec_b64 s[4:5], vcc')
    for p in range(4):
        b(f'buffer_store_dword {v(acc+p)}, {v(t+1)}, {s(SGOUT,4)}, 0 offen offset:{16*p}{flags}')
    b('s_mov_b64 exec, s[4:5]')
    return part2


def g1_kernel(name, stamps=False):
    a = Asm()
    VL = 1
    S_WAVE, S_RB, S_CT = 6, 7, 8
    SX, SG, SU, SH, SGO = 16, 20, 24, 28, 32
    a('s_cmp_ge_u32 s2, 216')
    a(f's_cbranch_scc1 {name}_end')
    a('s_load_dwordx2 s[36:37], s[0:1], 0')
    a('s_load_dwordx4 s[40:43], s[0:1], 80')
    a('s_load_dwordx2 s[44:45], s[0:1], 104')
    a('s_load_dwordx2 s[46:47], s[0:1], 128')
    a('v_lshrrev_b32 v2, 6, v0')
    a(f'v_and_b32 {v(VL)}, 63, v0')
    a(f'v_readfirstlane_b32 {s(S_WAVE)}, v2')
    g1_map(a, S_RB, S_CT)
    a('s_waitcnt lgkmcnt(0)')
    srd(a, SX, 36, X_BYTES)
    srd(a, SG, 40, W_BYTES)
    srd(a, SU, 42, W_BYTES)
    srd(a, SH, 46, WS_SIZE)
    srd(a, SGO, 46, 8192, WS_G)
    if stamps:
        stamp(a, SH, 0, 2, S_WAVE, 220, 1)
    a(f's_cmp_eq_u32 {s(S_WAVE)}, 6')
    a(f's_cbranch_scc1 {name}_ld0')
    a(f's_cmp_eq_u32 {s(S_WAVE)}, 7')
    a(f's_cbranch_scc1 {name}_ld1')
    a(f's_cmp_eq_u32 {s(S_WAVE)}, 4')
    a(f's_cbranch_scc1 {name}_gate')
    a(f's_cmp_eq_u32 {s(S_WAVE)}, 5')
    a(f's_cbranch_scc1 {name}_end')
    R = G1Regs(4)
    g1_addr(a, R, S_WAVE, VL)
    g1_main(a, R)
    if stamps:
        stamp(a, SH, 1, 2, S_WAVE, 220, 1)
    g1_epilogue(a, R, S_RB, S_CT, S_WAVE, SH)
    a('s_waitcnt vmcnt(0)')
    if stamps:
        stamp(a, SH, 2, 2, S_WAVE, 220, 1)
        a('s_waitcnt vmcnt(0)')
    a('s_endpgm')
    a.label(f'{name}_ld0')
    g1_loader(a, 0, S_RB, S_CT, VL, SX, SG, SU)
    a('s_endpgm')
    a.label(f'{name}_ld1')
    g1_loader(a, 1, S_RB, S_CT, VL, SX, SG, SU)
    a('s_endpgm')
    a.label(f'{name}_gate')
    a(f's_cmp_ge_u32 {s(S_CT)}, 16')
    a(f's_cbranch_scc1 {name}_end')
    p2 = gate_wave(a, S_RB, S_CT, VL, SX, 44, SGO)
    for i in range(4):
        a('s_barrier')
    n = len(p2.lines)
    a.extend(p2.lines[:n // 2])
    a('s_barrier')
    a.extend(p2.lines[n // 2:])
    a('s_waitcnt vmcnt(0)')
    a.label(f'{name}_end')
    a('s_endpgm')
    return a, max(R.end, 224 if stamps else 0)
```

```python
from common import *

G2_SLOT = 5120
G2_NS = 7
G2_RING = G2_SLOT * G2_NS
G2_AT = 4 * G2_RING
G2_LDS = G2_AT + 80 * 144
G2_K0 = [0, 14, 28, 41]
G2_N = [14, 14, 13, 13]
G2_D = 4
PART_ROW = 336


def g2_map(a, s_R, s_cg):
    a('s_and_b32 s3, s2, 7')
    a('s_lshl_b32 s3, s3, 2')
    a('s_lshr_b32 s4, s2, 3')
    a(f's_lshr_b32 {s(s_cg)}, s4, 2')
    a('s_and_b32 s4, s4, 3')
    a(f's_add_u32 {s(s_R)}, s3, s4')


def s_k0(a, d, s_w):
    a(f's_and_b32 s3, {s(s_w)}, 3')
    a(f's_mul_i32 {s(d)}, s3, 14')
    a('s_cmp_eq_u32 s3, 3')
    a(f's_subb_u32 {s(d)}, {s(d)}, 0')


def g2_loader(a, s_wave, s_R, s_cg, vlane, SW, SAT, vb=4, flags=''):
    t = vb + 5
    S_K, S_RING = 10, 11
    s_k0(a, S_K, s_wave)
    a(f's_mul_i32 {s(S_K)}, {s(S_K)}, {32*1280}')
    a(f's_and_b32 s3, {s(s_wave)}, 3')
    a(f's_mul_i32 {s(S_RING)}, s3, {G2_RING}')
    a(f's_mul_i32 s4, {s(s_cg)}, 160')
    for i in range(5):
        a(f'v_add_u32 {v(t)}, {64*i}, {v(vlane)}')
        a(f'v_mul_u32_u24 {v(t+1)}, 205, {v(t)}')
        a(f'v_lshrrev_b32 {v(t+1)}, 11, {v(t+1)}')
        a(f'v_mul_u32_u24 {v(t+2)}, {1280-160}, {v(t+1)}')
        a(f'v_lshl_add_u32 {v(t+2)}, {v(t)}, 4, {v(t+2)}')
        a(f'v_add_u32 {v(t+2)}, s4, {v(t+2)}')
        if i & 3:
            a(f'v_subrev_u32 {v(vb+i)}, {(i&3)*1024}, {v(t+2)}')
        else:
            a(f'v_mov_b32 {v(vb+i)}, {v(t+2)}')

    def issue(st):
        a(f's_add_u32 m0, {s(S_RING)}, {(st%G2_NS)*G2_SLOT}')
        a(f's_add_u32 s4, {s(S_K)}, {st*32*1280}')
        for i in range(4):
            a(f'buffer_load_dwordx4 {v(vb+i)}, {s(SW,4)}, s4 offen offset:{i*1024} lds')
        a(f's_add_u32 m0, {s(S_RING)}, {(st%G2_NS)*G2_SLOT+4096}')
        a(f'buffer_load_dwordx4 {v(vb+4)}, {s(SW,4)}, s4 offen lds')
    for st in range(G2_NS):
        issue(st)
    issued = G2_NS
    at = vb + 8; ad = vb + 20
    extra = 0
    for i in range(14):
        a(f's_waitcnt vmcnt({5*(issued-1-i)+extra})')
        a('s_barrier')
        if i >= 1 and issued < 14:
            issue(issued); issued += 1
            if issued == 14:
                a(f's_and_b32 s3, {s(s_wave)}, 3')
                a('s_lshl_b32 s3, s3, 6')
                a(f'v_add_u32 {v(t)}, s3, {v(vlane)}')
                a(f'v_lshrrev_b32 {v(t+1)}, 3, {v(t)}')
                a(f'v_and_b32 {v(t)}, 7, {v(t)}')
                a(f'v_lshlrev_b32 {v(t)}, 4, {v(t)}')
                a(f'v_mul_u32_u24 {v(ad)}, 144, {v(t+1)}')
                a(f'v_add_u32 {v(ad)}, {v(ad)}, {v(t)}')
                a(f'v_lshl_add_u32 {v(t)}, {v(t+1)}, 12, {v(t)}')
                a(f's_mul_i32 s4, {s(s_cg)}, {80*4096}')
                a(f's_lshl_b32 s3, {s(s_R)}, 7')
                a('s_add_u32 s4, s4, s3')
                for k in range(3):
                    if k == 2:
                        pass
                    a(f'buffer_load_dwordx4 {v(at+4*k,4)}, {v(t)}, {s(SAT,4)}, s4 offen{flags}')
                    if k < 2:
                        a(f's_add_u32 s4, s4, {32*4096}')
                extra = 3
    a('s_waitcnt vmcnt(0)')
    a(f'ds_write_b128 {v(ad)}, {v(at,4)} offset:{G2_AT-65536+0}' if False else f'v_add_u32 {v(ad)}, {G2_AT}, {v(ad)}')
    a(f'ds_write_b128 {v(ad)}, {v(at,4)}')
    a(f'ds_write_b128 {v(ad)}, {v(at+4,4)} offset:{32*144}')
    a(f's_and_b32 s3, {s(s_wave)}, 2')
    a('s_cmp_lg_u32 s3, 0')
    a('s_cbranch_scc1 g2_ld_skip')
    a(f'ds_write_b128 {v(ad)}, {v(at+8,4)} offset:{64*144}')
    a.label('g2_ld_skip')


class G2Regs:
    def __init__(self, base):
        b = base
        self.wa = b; b += 1
        self.ha = b; b += 1
        self.t = b; b += 2
        b = (b + 3) // 4 * 4
        self.H = b; b += 16 * G2_D
        self.W = [b, b + 20]; b += 40
        self.acc = b; b += 80
        self.end = b


def g2_main(a, R, s_wave, s_R, vlane, SH, n, flags=''):
    S_H = 10
    t = R.t
    s_k0(a, S_H, s_wave)
    a(f's_mul_i32 s4, {s(s_R)}, 54')
    a(f's_add_u32 {s(S_H)}, {s(S_H)}, s4')
    a(f's_lshl_b32 {s(S_H)}, {s(S_H)}, 12')
    a(f'v_lshlrev_b32 {v(R.ha)}, 4, {v(vlane)}')

    def hload(st, rb):
        return f'buffer_load_dwordx4 {v(R.H+16*(st%G2_D)+4*rb,4)}, {v(R.ha)}, {s(SH,4)}, s4 offen offset:{rb*1024}{flags}'
    for st in range(G2_D):
        a(f's_add_u32 s4, {s(S_H)}, {st*4096}')
        for rb in range(4):
            a(hload(st, rb))
    a(f'v_lshrrev_b32 {v(t)}, 5, {v(vlane)}')
    a(f'v_lshlrev_b32 {v(t)}, 4, {v(t)}')
    a(f'v_bfe_u32 {v(t+1)}, {v(vlane)}, 2, 3')
    a(f'v_add_u32 {v(t)}, {v(t)}, {v(t+1)}')
    a(f'v_mul_u32_u24 {v(t)}, 160, {v(t)}')
    a(f'v_and_b32 {v(t+1)}, 3, {v(vlane)}')
    a(f'v_lshl_add_u32 {v(t)}, {v(t+1)}, 3, {v(t)}')
    a(f's_mul_i32 s3, {s(s_wave)}, {G2_RING}')
    a(f'v_add_u32 {v(R.wa)}, s3, {v(t)}')

    def wreads(st):
        o = (st % G2_NS) * G2_SLOT
        return [f'ds_read_b64_tr_b16 {v(R.W[st&1]+4*cb+2*h,2)}, {v(R.wa)} offset:{o+h*1280+cb*32}'
                for cb in range(5) for h in range(2)]
    a('s_barrier')
    a.extend(wreads(0))
    for st in range(n):
        rem = min(n - 1, st + G2_D - 1) - st
        a(f's_waitcnt vmcnt({4*rem}) lgkmcnt(0)')
        rd = wreads(st + 1) if st + 1 < n else []
        ld = st + G2_D < n
        if ld:
            a(f's_add_u32 s4, {s(S_H)}, {(st+G2_D)*4096}')
        k = 0
        for rb in range(4):
            for cb in range(5):
                acc = R.acc + 4 * (rb * 5 + cb)
                cc = '0' if st == 0 else v(acc, 4)
                a(f'v_mfma_f32_16x16x32_bf16 {v(acc,4)}, {v(R.W[st&1]+4*cb,4)}, {v(R.H+16*(st%G2_D)+4*rb,4)}, {cc}')
                if k == 0 and st + 1 < 14:
                    a('s_barrier')
                if 1 <= k <= len(rd):
                    a(rd[k - 1])
                k += 1
            if ld:
                a(hload(st + G2_D, rb))
    a(f'v_and_b32 {v(t)}, 15, {v(vlane)}')
    a(f'v_mul_u32_u24 {v(t)}, {PART_ROW}, {v(t)}')
    a(f'v_and_b32 {v(t+1)}, 48, {v(vlane)}')
    a(f'v_add_u32 {v(t)}, {v(t)}, {v(t+1)}')
    a(f's_mul_i32 s3, {s(s_wave)}, {G2_RING}')
    a(f'v_add_u32 {v(t)}, s3, {v(t)}')
    for rb in range(4):
        for cb in range(5):
            a(f'ds_write_b128 {v(t)}, {v(R.acc+4*(rb*5+cb),4)} offset:{rb*16*PART_ROW+cb*64}')


def g2_final_pre(a, s_item, s_R, s_cg, vlane, SGI, vb, flags=''):
    idx, rb, pa, ta, oa, g = vb, vb + 1, vb + 2, vb + 3, vb + 4, vb + 5
    a(f'v_lshrrev_b32 {v(idx)}, 4, {v(vlane)}')
    a(f's_lshl_b32 s3, {s(s_item)}, 2')
    a(f'v_add_u32 {v(idx)}, s3, {v(idx)}')
    a(f'v_mul_u32_u24 {v(rb)}, 205, {v(idx)}')
    a(f'v_lshrrev_b32 {v(rb)}, 11, {v(rb)}')
    a(f'v_mul_u32_u24 {v(pa)}, 10, {v(rb)}')
    a(f'v_sub_u32 {v(idx)}, {v(idx)}, {v(pa)}')
    a(f'v_and_b32 {v(g)}, 15, {v(vlane)}')
    a(f'v_lshl_add_u32 {v(g)}, {v(rb)}, 4, {v(g)}')
    a(f'v_mul_u32_u24 {v(pa)}, {PART_ROW}, {v(g)}')
    a(f'v_lshl_add_u32 {v(pa)}, {v(idx)}, 5, {v(pa)}')
    a(f's_lshl_b32 s3, {s(s_R)}, 6')
    a(f'v_add_u32 {v(g)}, s3, {v(g)}')
    a(f'v_mul_u32_u24 {v(oa)}, 1280, {v(g)}')
    a(f'v_lshl_add_u32 {v(oa)}, {v(idx)}, 4, {v(oa)}')
    a(f's_mul_i32 s3, {s(s_cg)}, 160')
    a(f'v_add_u32 {v(oa)}, s3, {v(oa)}')
    a(f'v_lshlrev_b32 {v(g)}, 2, {v(g)}')
    a(f'buffer_load_dword {v(g)}, {v(g)}, {s(SGI,4)}, 0 offen{flags}')
    a(f'v_bfe_u32 {v(ta)}, {v(vlane)}, 2, 2')
    a(f'v_lshl_add_u32 {v(ta)}, {v(idx)}, 3, {v(ta)}')
    a(f'v_mul_u32_u24 {v(ta)}, 144, {v(ta)}')
    a(f'v_lshl_add_u32 {v(ta)}, {v(rb)}, 5, {v(ta)}')
    a(f'v_and_b32 {v(rb)}, 3, {v(vlane)}')
    a(f'v_lshl_add_u32 {v(ta)}, {v(rb)}, 3, {v(ta)}')
    a(f'v_add_u32 {v(ta)}, {G2_AT}, {v(ta)}')


def g2_final(a, vb, d, SO):
    pa, ta, oa, g = vb + 2, vb + 3, vb + 4, vb + 5
    a(f'v_add_u32 {v(vb)}, {2*G2_RING}, {v(pa)}')
    for w in range(4):
        for h in range(2):
            a(f'ds_read_b128 {v(d+8*w+4*h,4)}, {v(pa if w < 2 else vb)} offset:{(w&1)*G2_RING+16*h}')
    A = d + 32
    a(f'ds_read_b64_tr_b16 {v(A,2)}, {v(ta)}')
    a(f'ds_read_b64_tr_b16 {v(A+2,2)}, {v(ta)} offset:{4*144}')
    a('s_waitcnt lgkmcnt(6)')
    for i in range(8):
        a(f'v_add_f32 {v(d+i)}, {v(d+i)}, {v(d+8+i)}')
    a('s_waitcnt lgkmcnt(2)')
    for i in range(8):
        a(f'v_add_f32 {v(d+16+i)}, {v(d+16+i)}, {v(d+24+i)}')
    for i in range(8):
        a(f'v_add_f32 {v(d+i)}, {v(d+i)}, {v(d+16+i)}')
    a('s_waitcnt vmcnt(0) lgkmcnt(0)')
    for i in range(8):
        if i & 1:
            a(f'v_and_b32 {v(d+8+i)}, 0xffff0000, {v(A+i//2)}')
        else:
            a(f'v_lshlrev_b32 {v(d+8+i)}, 16, {v(A+i//2)}')
    for i in range(8):
        a(f'v_sub_f32 {v(d+8+i)}, {v(d+8+i)}, {v(d+i)}')
    for i in range(8):
        a(f'v_fmac_f32 {v(d+i)}, {v(g)}, {v(d+8+i)}')
    for i in range(4):
        a(f'v_cvt_pk_bf16_f32 {v(d+16+i)}, {v(d+2*i)}, {v(d+2*i+1)}')
    a(f'buffer_store_dwordx4 {v(d+16,4)}, {v(oa)}, {s(SO,4)}, 0 offen')


def g2_kernel(name, stamps=False):
    a = Asm()
    VL = 1
    S_WAVE, S_R, S_CG, S_IT = 6, 7, 8, 9
    SW, SH, SAT, SGI, SO = 16, 20, 24, 28, 32
    a('s_cmp_ge_u32 s2, 256')
    a(f's_cbranch_scc1 {name}_end')
    a('s_load_dwordx2 s[36:37], s[0:1], 96')
    a('s_load_dwordx2 s[38:39], s[0:1], 112')
    a('s_load_dwordx2 s[40:41], s[0:1], 128')
    a('v_lshrrev_b32 v2, 6, v0')
    a(f'v_and_b32 {v(VL)}, 63, v0')
    a(f'v_readfirstlane_b32 {s(S_WAVE)}, v2')
    g2_map(a, S_R, S_CG)
    a('s_waitcnt lgkmcnt(0)')
    srd(a, SW, 36, W_BYTES)
    srd(a, SH, 40, WS_SIZE)
    srd(a, SAT, 40, 640 * 4096, WS_AT)
    srd(a, SGI, 40, 8192, WS_G)
    srd(a, SO, 38, X_BYTES)
    if stamps:
        stamp(a, SH, 0, 2, S_WAVE, 240, 2)
    FB = 200
    a(f's_cmp_ge_u32 {s(S_WAVE)}, 4')
    a(f's_cbranch_scc1 {name}_ld')
    R = G2Regs(4)
    assert R.end <= FB
    a(f's_cmp_ge_u32 {s(S_WAVE)}, 2')
    a(f's_cbranch_scc1 {name}_g13')
    g2_main(a, R, S_WAVE, S_R, VL, SH, 14)
    a(f's_branch {name}_fin')
    a.label(f'{name}_g13')
    g2_main(a, R, S_WAVE, S_R, VL, SH, 13)
    a(f's_branch {name}_fin')
    a.label(f'{name}_ld')
    g2_loader(a, S_WAVE, S_R, S_CG, VL, SW, SAT)
    a.label(f'{name}_fin')
    if stamps:
        stamp(a, SH, 1, 2, S_WAVE, 240, 2)
    g2_final_pre(a, S_WAVE, S_R, S_CG, VL, SGI, FB)
    a('s_waitcnt lgkmcnt(0)')
    a('s_barrier')
    g2_final(a, FB, 4, SO)
    a(f's_cmp_ge_u32 {s(S_WAVE)}, 2')
    a(f's_cbranch_scc1 {name}_done')
    a(f's_add_u32 {s(S_IT)}, {s(S_WAVE)}, 8')
    g2_final_pre(a, S_IT, S_R, S_CG, VL, SGI, FB + 8)
    g2_final(a, FB + 8, 44, SO)
    a.label(f'{name}_done')
    a('s_waitcnt vmcnt(0)')
    if stamps:
        stamp(a, SH, 2, 2, S_WAVE, 240, 2)
        a('s_waitcnt vmcnt(0)')
    a.label(f'{name}_end')
    a('s_endpgm')
    return a, (244 if stamps else FB + 16)
```

```python
from common import *
from ssm import *

XS = 16
RA0 = 32800
RA_STRIDE = 8736
RB0 = RA0 + 8 * RA_STRIDE
SSM_LDS = RB0 + 8 * KT_SIZE


def deinterleave(a, s_wave, vlane, t, d):
    a(f'v_lshrrev_b32 {v(t)}, 4, {v(vlane)}')
    a(f'v_and_b32 {v(t+1)}, 3, {v(vlane)}')
    a(f'v_lshl_add_u32 {v(t)}, {v(t)}, 2, {v(t+1)}')
    a(f'v_bfe_u32 {v(t+1)}, {v(vlane)}, 2, 2')
    a(f'v_lshl_add_u32 {v(t)}, {v(t)}, 2, {v(t+1)}')
    a(f'v_lshlrev_b32 {v(t)}, 4, {v(t)}')
    a(f's_lshl_b32 s3, {s(s_wave)}, 12')
    a(f'v_add_u32 {v(t)}, s3, {v(t)}')
    a(f'v_and_b32 {v(t+1)}, 3, {v(vlane)}')
    a(f'v_mul_u32_u24 {v(t+1)}, {RA_STRIDE}, {v(t+1)}')
    a(f'v_lshrrev_b32 {v(t+2)}, 2, {v(vlane)}')
    a(f'v_lshl_add_u32 {v(t+1)}, {v(t+2)}, 3, {v(t+1)}')
    a(f's_lshl_b32 s3, {s(s_wave)}, 9')
    a(f's_add_u32 s3, s3, {RA0+32}')
    a(f'v_add_u32 {v(t+1)}, s3, {v(t+1)}')
    items = [(blk, chq, cp) for blk in range(4) for chq in range(2) for cp in range(2)]
    return items


def deint_run(a, items, t, d):
    for g in range(0, 16, 8):
        for i, (blk, chq, cp) in enumerate(items[g:g + 8]):
            a(f'ds_read_b64_tr_b16 {v(d+2*(g+i),2)}, {v(t)} offset:{blk*1024+8*chq+16*(1-cp)}')
    a('s_waitcnt lgkmcnt(0)')
    for i, (blk, chq, cp) in enumerate(items):
        a(f'ds_write_b64 {v(t+1)}, {v(d+2*i,2)} offset:{chq*4*RA_STRIDE+cp*U_COPY+blk*128}')


def ssm_kernel(name, nwg=80, stamps=False):
    a = Asm()
    VL = 1
    S_WAVE, S_CH, S_STG, S_KT = 6, 7, 8, 9
    P = 16
    a(f's_cmp_ge_u32 s2, {nwg}')
    a(f's_cbranch_scc1 {name}_end')
    a(f's_load_dwordx16 s[16:31], s[0:1], 0')
    a(f's_load_dwordx2 s[32:33], s[0:1], 64')
    a(f's_load_dwordx2 s[34:35], s[0:1], 128')
    a(f'v_lshrrev_b32 v2, 6, v0')
    a(f'v_and_b32 {v(VL)}, 63, v0')
    a(f'v_readfirstlane_b32 {s(S_WAVE)}, v2')
    a(f's_lshl_b32 {s(S_CH)}, s2, 3')
    a(f's_add_u32 {s(S_CH)}, {s(S_CH)}, {s(S_WAVE)}')
    a(f's_mul_i32 {s(S_STG)}, {s(S_WAVE)}, {RA_STRIDE}')
    a(f's_add_u32 {s(S_STG)}, {s(S_STG)}, {RA0}')
    a(f's_mul_i32 {s(S_KT)}, {s(S_WAVE)}, {KT_SIZE}')
    a(f's_add_u32 {s(S_KT)}, {s(S_KT)}, {RB0}')
    R = KgenRegs(4)
    kgen_addr(a, R, S_STG, VL)
    a('s_waitcnt lgkmcnt(0)')
    srd(a, 36, 16, X_BYTES)
    srd(a, 40, 34, 640 * 4096, WS_AT)
    srd(a, 44, 34, WS_SIZE)
    if stamps:
        stamp(a, 44, 0, 2, S_WAVE, 200)
    kgen_loads(a, R, 18, 30, 32, S_CH, VL)
    a(f's_lshl_b32 s3, {s(S_WAVE)}, 8')
    a(f'v_add_u32 v2, s3, {v(VL)}')
    a(f'v_mul_u32_u24 v2, 1280, v2')
    a(f's_lshl_b32 s3, s2, 4')
    a(f'v_add_u32 v2, s3, v2')
    a(f's_lshl_b32 s3, {s(S_WAVE)}, 12')
    a(f's_add_u32 m0, s3, {XS}')
    for i in range(4):
        a(f's_mov_b32 s3, {i*(64*1280-1024)}')
        a(f'buffer_load_dwordx4 v2, s[36:39], s3 offen offset:{i*1024} lds')
    a('v_mov_b32 v2, 0')
    a('v_mov_b32 v3, 0')
    a('ds_write_b64 v2, v[2:3]')
    a('ds_write_b64 v2, v[2:3] offset:8')
    a('s_waitcnt vmcnt(4)')
    kgen_body(a, R)
    z = kexpand(a, R, S_KT, VL)
    a(f'v_mov_b32 v2, {s(S_STG)}')
    for o in (0, 16, U_COPY, U_COPY + 16):
        a(f'ds_write_b128 v2, {v(z,4)} offset:{o}')
    if stamps:
        stamp(a, 44, 1, 2, S_WAVE, 200)
    items = deinterleave(a, S_WAVE, VL, R.t, 0)
    C = ConvRegs(R.t + 4)
    a('s_waitcnt vmcnt(0) lgkmcnt(0)')
    a('s_barrier')
    deint_run(a, items, R.t, C.T[1])
    conv_addr(a, C, S_STG, S_KT, S_CH, VL)
    a('s_waitcnt lgkmcnt(0)')
    a('s_barrier')
    if stamps:
        stamp(a, 44, 2, 2, S_WAVE, 200)
    conv_body(a, C)
    conv_store(a, C, 40)
    if stamps:
        stamp(a, 44, 3, 2, S_WAVE, 200)
    a('s_waitcnt vmcnt(0)')
    a.label(f'{name}_end')
    a('s_endpgm')
    return a, max(C.end, R.end, 204 if stamps else 0)
```

```python
from asmlib import *

LOG2E = 0x3fb8aa3b
INV2PI = 0x3e22f983
STG_ROW = 272
U_COPY = 4160
U_SIZE = 8320
KT_SIZE = 4576

ROW_OF = {256: [8], 258: [9], 260: [10, 12], 262: [13], 264: [14], 512: [16], 516: [17], 520: [18],
          768: [20], 772: [21], 776: [22], 1024: [24], 1032: [25], 1536: [26], 1544: [27],
          1280: [28], 1288: [29], 1792: [30], 1800: [31]}
for i in range(8):
    ROW_OF[i] = [i]


class KgenRegs:
    def __init__(self, base):
        b = base
        self.par = b; b += 6
        self.ldt = b; b += 1
        self.dsk = b; b += 1
        self.wa = b; b += 1
        self.ra = b; b += 1
        self.t = b; b += 8
        self.z = b; b += 3
        self.y1 = b; b += 3
        self.zz = b; b += 3
        self.c = b; b += 12
        self.pk = b; b += 2
        b = (b + 3) // 4 * 4
        self.bf = b; b += 32
        self.af = b; b += 16
        self.acc = b; b += 16
        self.end = b


def cmul(a, d, x, m):
    a(f'v_mul_f32 {v(d)}, {v(x)}, {v(m)}')
    a(f'v_mul_f32 {v(d+1)}, {v(x)}, {v(m+1)}')
    a(f'v_fmac_f32 {v(d)}, {v(x+1)}, {v(m+2)}')
    a(f'v_fmac_f32 {v(d+1)}, {v(x+1)}, {v(m)}')


def kgen_loads(a, R, sp, s_ldt, s_dsk, s_ch, vlane):
    t = R.t
    a(f's_lshl_b32 s3, {s(s_ch)}, 8')
    a(f'v_lshlrev_b32 {v(t)}, 2, {v(vlane)}')
    a(f'v_add_u32 {v(t)}, s3, {v(t)}')
    a(f's_lshl_b32 s3, {s(s_ch)}, 1')
    a(f'v_mov_b32 {v(t+1)}, s3')
    a(f'global_load_ushort {v(R.ldt)}, {v(t+1)}, {s(s_ldt,2)}')
    for i in range(6):
        a(f'global_load_dword {v(R.par+i)}, {v(t)}, {s(sp+2*i,2)}')
    a(f'global_load_ushort {v(R.dsk)}, {v(t+1)}, {s(s_dsk,2)}')


def kgen_addr(a, R, s_stg, vlane):
    t = R.t + 2
    a(f'v_lshlrev_b32 {v(R.wa)}, 2, {v(vlane)}')
    a(f'v_add_u32 {v(R.wa)}, {s(s_stg)}, {v(R.wa)}')
    a(f'v_and_b32 {v(t)}, 31, {v(vlane)}')
    a(f'v_mul_u32_u24 {v(t)}, {STG_ROW}, {v(t)}')
    a(f'v_lshrrev_b32 {v(t+1)}, 5, {v(vlane)}')
    a(f'v_lshl_add_u32 {v(t)}, {v(t+1)}, 4, {v(t)}')
    a(f'v_add_u32 {v(R.ra)}, {s(s_stg)}, {v(t)}')


def kgen_body(a, R):
    t = R.t
    a(f'v_lshlrev_b32 {v(R.ldt)}, 16, {v(R.ldt)}')
    a(f'v_mul_f32 {v(R.ldt)}, {hex(LOG2E)}, {v(R.ldt)}')
    a(f'v_exp_f32 {v(R.ldt)}, {v(R.ldt)}')
    a(f'v_lshlrev_b32 {v(R.dsk)}, 16, {v(R.dsk)}')
    a(f'v_cvt_pk_bf16_f32 {v(R.ldt)}, {v(R.ldt)}, {v(R.ldt)}')
    a(f'v_and_b32 {v(R.ldt)}, 0xffff0000, {v(R.ldt)}')
    pkflip = [0]

    def put(x, rows, neg):
        p = R.pk + pkflip[0]; pkflip[0] ^= 1
        a(f'v_cvt_pk_bf16_f32 {v(p)}, {v(x)}, {"-" if neg else ""}{v(x+1)}')
        for r in rows:
            a(f'ds_write_b32 {v(R.wa)}, {v(p)} offset:{r*STG_ROW}')

    for half in range(2):
        def ext(d, src):
            if half == 0:
                a(f'v_lshlrev_b32 {v(d)}, 16, {v(src)}')
            else:
                a(f'v_and_b32 {v(d)}, 0xffff0000, {v(src)}')
        ext(t, R.par); ext(t + 1, R.par + 1)
        a(f'v_mul_f32 {v(t)}, {v(R.ldt)}, {v(t)}')
        a(f'v_mul_f32 {v(t+1)}, {v(R.ldt)}, {v(t+1)}')
        a(f'v_mul_f32 {v(t)}, {hex(LOG2E)}, {v(t)}')
        a(f'v_mul_f32 {v(t+1)}, {hex(INV2PI)}, {v(t+1)}')
        a(f'v_mul_f32 {v(t+2)}, 0x41000000, {v(t)}')
        a(f'v_mul_f32 {v(t+3)}, 0x41000000, {v(t+1)}')
        a(f'v_fract_f32 {v(t+1)}, {v(t+1)}')
        a(f'v_fract_f32 {v(t+3)}, {v(t+3)}')
        a(f'v_exp_f32 {v(t+2)}, {v(t+2)}')
        a(f'v_cos_f32 {v(R.y1)}, {v(t+3)}')
        a(f'v_sin_f32 {v(R.y1+1)}, {v(t+3)}')
        a(f'v_exp_f32 {v(t)}, {v(t)}')
        a(f'v_cos_f32 {v(R.z)}, {v(t+1)}')
        a(f'v_sin_f32 {v(R.z+1)}, {v(t+1)}')
        a(f'v_mul_f32 {v(R.y1)}, {v(t+2)}, {v(R.y1)}')
        a(f'v_mul_f32 {v(R.y1+1)}, {v(t+2)}, {v(R.y1+1)}')
        a(f'v_mov_b32 {v(t+4)}, 0x3f80')
        a(f'v_mul_f32 {v(R.z)}, {v(t)}, {v(R.z)}')
        a(f'v_mul_f32 {v(R.z+1)}, {v(t)}, {v(R.z+1)}')
        a(f'v_sub_f32 {v(R.y1+2)}, 0, {v(R.y1+1)}')
        a(f'v_sub_f32 {v(R.z+2)}, 0, {v(R.z+1)}')
        a(f'ds_write_b32 {v(R.wa)}, {v(t+4)}')
        put(R.y1, [1], False)
        cur = R.y1
        for j in range(2, 33):
            d = R.zz if j == 32 else R.c + 2 * (j & 1)
            cmul(a, d, cur, R.y1)
            if j < 32:
                put(d, [j], False)
            cur = d
        a(f'v_sub_f32 {v(R.zz+2)}, 0, {v(R.zz+1)}')
        for m in range(8):
            a(f'ds_read_b128 {v(R.bf+4*m,4)}, {v(R.ra)} offset:{32*m}')
        ext(t, R.par + 2); ext(t + 1, R.par + 3); ext(t + 2, R.par + 4); ext(t + 3, R.par + 5)
        a(f'v_mul_f32 {v(t)}, {v(R.ldt)}, {v(t)}')
        a(f'v_mul_f32 {v(t+1)}, {v(R.ldt)}, {v(t+1)}')
        a(f'v_sub_f32 {v(t+4)}, 0, {v(t+3)}')
        c = R.c
        X0, X2, X4, X6, XA, XB = c, c + 2, c + 4, c + 6, c + 8, c + 10
        cmul(a, X0, t, t + 2); put(X0, [0], True)
        cmul(a, XA, X0, R.z); put(XA, [1], True)
        cmul(a, X2, XA, R.z); put(X2, [2], True)
        cmul(a, XA, X2, R.z); put(XA, [3], True)
        cmul(a, X4, XA, R.z); put(X4, [4], True)
        cmul(a, XA, X4, R.z); put(XA, [5], True)
        cmul(a, X6, XA, R.z); put(X6, [6], True)
        cmul(a, XA, X6, R.z); put(XA, [7], True)
        cmul(a, XA, X2, R.zz); put(XA, ROW_OF[258], True)
        cmul(a, XA, X6, R.zz); put(XA, ROW_OF[262], True)
        cmul(a, X2, X0, R.zz); put(X2, ROW_OF[256], True)
        cmul(a, X6, X4, R.zz); put(X6, ROW_OF[260], True)
        cmul(a, XA, X2, R.y1); put(XA, ROW_OF[264], True)
        cmul(a, X4, X6, R.zz); put(X4, ROW_OF[516], True)
        cmul(a, X6, X4, R.zz); put(X6, ROW_OF[772], True)
        p0, q0, p1, q1 = X2, XA, X0, XB
        for al in (512, 768, 1024, 1280, 1536, 1792):
            cmul(a, p1, p0, R.zz); put(p1, ROW_OF[al], True)
            cmul(a, q1, q0, R.zz); put(q1, ROW_OF[al + 8], True)
            p0, p1 = p1, p0
            q0, q1 = q1, q0
        for m0 in (0, 4):
            for m in range(4):
                a(f'ds_read_b128 {v(R.af+4*m,4)}, {v(R.ra)} offset:{32*(m0+m)}')
            for m in range(4):
                a(f's_waitcnt lgkmcnt({3-m})')
                cc = '0' if (half == 0 and m0 + m == 0) else v(R.acc, 16)
                a(f'v_mfma_f32_32x32x16_bf16 {v(R.acc,16)}, {v(R.af+4*m,4)}, {v(R.bf+4*(m0+m),4)}, {cc}')


def kexpand(a, R, s_kt, vlane):
    t = R.t; A = R.acc
    w = R.bf
    ad = R.c
    a(f'v_and_b32 {v(t)}, 31, {v(vlane)}')
    a(f'v_lshrrev_b32 {v(t+1)}, 5, {v(vlane)}')
    a(f'v_lshlrev_b32 {v(t+2)}, 4, {v(t)}')
    a(f'v_lshl_add_u32 {v(t+3)}, {v(t+1)}, 3, {v(t+2)}')
    a(f'v_sub_u32 {v(ad)}, {s(s_kt)}, {v(t+3)}')
    a(f'v_lshl_add_u32 {v(t+3)}, {v(t+1)}, 9, {v(t+2)}')
    a(f'v_sub_u32 {v(ad+1)}, {s(s_kt)}, {v(t+3)}')
    a(f'v_lshlrev_b32 {v(ad+2)}, 4, {v(vlane)}')
    a(f'v_add_u32 {v(ad+2)}, {s(s_kt)}, {v(ad+2)}')
    a(f'v_add_u32 {v(ad)}, {2*2044-512}, {v(ad)}')
    a(f'v_add_u32 {v(ad+1)}, {2*(2040-1536)}, {v(ad+1)}')
    a(f'v_cmp_eq_u32 vcc, 0, {v(vlane)}')
    a(f'v_cndmask_b32 {v(t+4)}, 0, {v(R.dsk)}, vcc')
    a(f'v_and_b32 {v(t+5)}, 1, {v(vlane)}')
    a(f'v_cmp_eq_u32 vcc, 0, {v(t+5)}')
    a(f'v_add_f32 {v(A)}, {v(A)}, {v(t+4)}')
    a(f'v_cvt_pk_bf16_f32 {v(w)}, {v(A+3)}, {v(A+2)}')
    a(f'v_cvt_pk_bf16_f32 {v(w+1)}, {v(A+1)}, {v(A)}')
    a(f'ds_write_b64 {v(ad)}, {v(w,2)} offset:512')
    a(f'v_cvt_pk_bf16_f32 {v(w+2)}, {v(A+6)}, {v(A+5)}')
    a(f'v_cvt_pk_bf16_f32 {v(w+3)}, {v(A+4)}, {v(A+4)}')
    a(f'ds_write_b64 {v(ad)}, {v(w+2,2)}')
    a(f'v_cvt_pk_bf16_f32 {v(w+4)}, {v(A+10)}, {v(A+10)}')
    a(f'v_cvt_pk_bf16_f32 {v(w+5)}, {v(A+9)}, {v(A+9)}')
    a(f'v_cvt_pk_bf16_f32 {v(w+6)}, {v(A+9)}, {v(A+8)}')
    a(f'v_cvt_pk_bf16_f32 {v(w+7)}, {v(A+8)}, {v(A+8)}')
    a(f'ds_write_b128 {v(ad+1)}, {v(w+4,4)} offset:{2*(1536-512)}')
    for i, al in ((0, 1024), (1, 1536)):
        k0, k8 = A + 12 + 2 * i, A + 13 + 2 * i
        o = w + 8 + 4 * i
        a(f'v_cndmask_b32 {v(t+6)}, {v(k8)}, {v(k0)}, vcc')
        a(f'v_cvt_pk_bf16_f32 {v(o)}, {v(k8)}, {v(k8)}')
        a(f'v_cvt_pk_bf16_f32 {v(o+1)}, {v(k8)}, {v(t+6)}')
        a(f'v_cvt_pk_bf16_f32 {v(o+2)}, {v(k0)}, {v(k0)}')
        a(f'v_mov_b32 {v(o+3)}, {v(o+2)}')
        a(f'ds_write_b128 {v(ad+1)}, {v(o,4)} offset:{2*(1536-al)}')
    z = w + 16
    for i in range(4):
        a(f'v_mov_b32 {v(z+i)}, 0')
    a(f'v_cmp_gt_u32 vcc, 30, {v(vlane)}')
    a('s_and_saveexec_b64 s[4:5], vcc')
    a(f'ds_write_b128 {v(ad+2)}, {v(z,4)} offset:4096')
    a('s_mov_b64 exec, s[4:5]')
    return z


class ConvRegs:
    def __init__(self, base):
        b = base
        self.ta = b; b += 4
        self.ga = b; b += 1
        self.oa = b; b += 1
        self.t = b; b += 2
        b = (b + 3) // 4 * 4
        self.acc = b; b += 32
        self.T = [b, b + 32]; b += 64
        self.G = [b, b + 32]; b += 64
        self.end = b


def conv_addr(a, C, s_u, s_kt, s_ch, vlane):
    t = C.t
    a(f'v_and_b32 {v(t)}, 15, {v(vlane)}')
    a(f'v_lshrrev_b32 {v(t+1)}, 4, {v(vlane)}')
    a(f'v_lshlrev_b32 {v(C.ga)}, 4, {v(t+1)}')
    a(f'v_lshlrev_b32 {v(C.oa)}, 5, {v(t)}')
    a(f'v_sub_u32 {v(C.ga)}, {v(C.ga)}, {v(C.oa)}')
    a(f'v_add_u32 {v(C.ga)}, 480, {v(C.ga)}')
    a(f'v_add_u32 {v(C.ga)}, {s(s_kt)}, {v(C.ga)}')
    a(f'v_and_b32 {v(C.ta)}, 1, {v(t+1)}')
    a(f'v_lshl_add_u32 {v(C.oa)}, {v(C.ta)}, 9, {v(C.oa)}')
    a(f'v_and_b32 {v(C.ta)}, 2, {v(t+1)}')
    a(f'v_lshl_add_u32 {v(C.oa)}, {v(C.ta)}, 3, {v(C.oa)}')
    a(f's_lshl_b32 s3, {s(s_ch)}, 12')
    a(f'v_add_u32 {v(C.oa)}, s3, {v(C.oa)}')
    a(f'v_lshrrev_b32 {v(C.ta)}, 1, {v(t)}')
    a(f'v_lshl_add_u32 {v(C.ta)}, {v(t+1)}, 2, {v(C.ta)}')
    a(f'v_lshlrev_b32 {v(C.ta)}, 2, {v(C.ta)}')
    a(f'v_and_b32 {v(t)}, 1, {v(t)}')
    a(f'v_mul_u32_u24 {v(t)}, {U_COPY}, {v(t)}')
    a(f'v_sub_u32 {v(C.ta)}, {v(C.ta)}, {v(t)}')
    a(f'v_add_u32 {v(C.ta)}, {U_COPY+4}, {v(C.ta)}')
    a(f'v_add_u32 {v(C.ta)}, {s(s_u)}, {v(C.ta)}')
    for i in range(1, 4):
        a(f'v_add_u32 {v(C.ta+i)}, {1024*i}, {v(C.ta)}')


def conv_loads(C, m0, buf):
    L = []
    T, G = C.T[buf], C.G[buf]
    for i in range(8):
        L.append(f'ds_read_b128 {v(G+4*i,4)}, {v(C.ga)} offset:{2*(1760+32*m0-256*i)}')
        o = 16 * (m0 - 1) + 128 * (i & 1)
        L.append(f'ds_read2_b32 {v(T+4*i,2)}, {v(C.ta+(i>>1))} offset0:{o} offset1:{o+1}')
        L.append(f'ds_read2_b32 {v(T+4*i+2,2)}, {v(C.ta+(i>>1))} offset0:{o+2} offset1:{o+3}')
    return L


def conv_body(a, C, m0s=range(1, 9)):
    m0s = list(m0s)
    a.extend(conv_loads(C, m0s[0], 0))
    for it, m0 in enumerate(m0s):
        buf = it & 1
        T, G = C.T[buf], C.G[buf]
        M = []
        for c in range(8):
            for mu in range(c + 1):
                de = c - mu
                cc = '0' if (it == 0 and mu == 0) else v(C.acc + 4 * c, 4)
                M.append(f'v_mfma_f32_16x16x32_bf16 {v(C.acc+4*c,4)}, {v(T+4*mu,4)}, {v(G+4*de,4)}, {cc}')
        a('s_waitcnt lgkmcnt(0)')
        if it + 1 < len(m0s):
            a.extend(interleave(M, conv_loads(C, m0s[it + 1], buf ^ 1), 0, 30))
        else:
            a.extend(M)


def conv_store(a, C, srd, flags=''):
    p = C.T[0]
    for c in range(8):
        A = C.acc + 4 * c
        a(f'v_cvt_pk_bf16_f32 {v(p+2*c)}, {v(A)}, {v(A+1)}')
        a(f'v_cvt_pk_bf16_f32 {v(p+2*c+1)}, {v(A+2)}, {v(A+3)}')
    for c in range(0, 8, 2):
        a(f'v_permlane16_swap_b32 {v(p+2*c)}, {v(p+2*c+2)}')
        a(f'v_permlane16_swap_b32 {v(p+2*c+1)}, {v(p+2*c+3)}')
    for c in range(0, 8, 2):
        a(f'buffer_store_dwordx4 {v(p+2*c,4)}, {v(C.oa)}, {s(srd,4)}, 0 offen offset:{512*c}{flags}')
```

```python
import sys
from build import *
from k_ssm import ssm_kernel, SSM_LDS
from gemm1 import g1_kernel, G1_LDS
from gemm2 import g2_kernel, G2_LDS
st = len(sys.argv) > 2 and sys.argv[2] == 'stamps'
ks = [('ssm_kernel',) + ssm_kernel('ssm_kernel', 80, st), ('g1_kernel',) + g1_kernel('g1_kernel', st), ('g2_kernel',) + g2_kernel('g2_kernel', st)]
write(sys.argv[1], [('ssm_kernel', 80, 512, SSM_LDS), ('g1_kernel', 216, 512, G1_LDS), ('g2_kernel', 256, 512, G2_LDS)], ks)
```

```python
from asmlib import *
WS_H = 0
WS_AT = 0x700000
WS_G = 0xA00000
WS_FL = 0xA10000
FL_H = WS_FL
FL_GA = WS_FL + 0x4000
FL_CA = WS_FL + 0xC000
D_CNT, D_GO = 0, 128
WS_STAMP = 0xB00000
WS_UT = 0xC00000
WS_WP = 0x1000000
WS_SIZE = 0x1400000
X_BYTES = 2048 * 1280
W_BYTES = 640 * 3456
NAME = 'gated_mix__ssm_conv_s4__glu_gated_bilinear__prompt'

S_WAVE, S_RB, S_CT, S_K0, S_X, S_IDX, S_TMO, S_R2, S_CG, S_SIDE = 6, 7, 8, 9, 10, 11, 12, 13, 14, 15
P_X, P_PAR, P_LDT, P_DSK, P_WG, P_WU, P_WD, P_GW, P_OUT, P_DBG, P_WS = 16, 18, 30, 32, 36, 38, 40, 42, 44, 46, 48
SX, SW, SWS, SO = 52, 56, 60, 64
S_CH, S_UB, S_KT, S_MOFF, S_NIT, S_MODE, S_MB, S_AT = 68, 69, 70, 71, 72, 73, 74, 75
SL = 76
VL = 1
V_RA, V_J1 = 252, 253
S_KW = 50

LDS_SIZE = 163840
FB = 161792
F_DONE = FB
F_READY = FB + 1024
F_MISC = FB + 1536
M_TK, M_TAIL = 12, 40
M_Z, M_WD, M_HCNT, M_RDY, M_MBF, M_CDONE, M_STG = 0, 4, 8, 16, 48, 64, 96
RA_STRIDE = 8736
G_UB, G_KT, G_MB, G_AT = 98304, 115776, 124928, 141312
S_UB0, S_KT0 = 81920, 134336
S_AT0 = S_UB0 + 4 * RA_STRIDE


def srd(a, d, p, nbytes):
    a(f's_mov_b32 {s(d)}, {s(p)}')
    a(f's_mov_b32 {s(d+1)}, {s(p+1)}')
    a(f's_mov_b32 {s(d+2)}, {hex(nbytes)}')
    a(f's_mov_b32 {s(d+3)}, 0x20000')


_uid = [0]


def uid(p):
    _uid[0] += 1
    return f'{p}_{_uid[0]}'


def spin(a, loads, wait, cmp, sleep=0):
    n = uid('spin')
    a.label(n)
    a.extend(loads)
    a(wait)
    a.extend(cmp)
    a(f's_cbranch_vccz {n}_ok')
    if sleep:
        a(f's_sleep {sleep}')
    a(f's_sub_u32 {s(S_TMO)}, {s(S_TMO)}, 1')
    a(f's_cbranch_scc0 {n}')
    a(f's_mov_b32 {s(S_TMO)}, 0')
    a.label(n + '_ok')


def lds_flag_wait(a, vt, off, sleep=0, nwords=1):
    if isinstance(off, int):
        if nwords == 1:
            a(f'v_mov_b32 {v(vt)}, {F_MISC+off}')
        else:
            a(f'v_and_b32 {v(vt)}, {nwords-1}, {v(VL)}')
            a(f'v_lshlrev_b32 {v(vt)}, 2, {v(vt)}')
            a(f'v_add_u32 {v(vt)}, {F_MISC+off}, {v(vt)}')
    else:
        a(f'v_mov_b32 {v(vt)}, {off}')
        a(f'v_add_u32 {v(vt)}, {F_MISC}, {v(vt)}')
    spin(a, [f'ds_read_b32 {v(vt+1)}, {v(vt)}'], 's_waitcnt lgkmcnt(0)', [f'v_cmp_eq_u32 vcc, 0, {v(vt+1)}'], sleep)


def lds_flag_set(a, vt, off):
    if isinstance(off, int):
        a(f'v_mov_b32 {v(vt)}, {F_MISC+off}')
    else:
        a(f'v_mov_b32 {v(vt)}, {off}')
        a(f'v_add_u32 {v(vt)}, {F_MISC}, {v(vt)}')
    a(f'v_mov_b32 {v(vt+1)}, 1')
    a(f'ds_write_b32 {v(vt)}, {v(vt+1)}')


def flag_store(a, vt, s_off):
    a(f'v_mov_b32 {v(vt)}, 0')
    a(f'v_mov_b32 {v(vt+1)}, 1')
    a('s_mov_b64 exec, 1')
    a(f'buffer_store_dword {v(vt+1)}, {v(vt)}, {s(SWS,4)}, {s_off} offen sc1')
    a('s_mov_b64 exec, -1')


def dbg_arrive(a, vt, cnt_off, n, go_off):
    lb = uid('arr')
    a(f'v_mov_b32 {v(vt)}, 0')
    a(f'v_mov_b32 {v(vt+1)}, 1')
    a('s_waitcnt vmcnt(0)')
    a('s_mov_b64 exec, 1')
    a(f'global_atomic_add {v(vt+2)}, {v(vt)}, {v(vt+1)}, {s(P_DBG,2)} offset:{cnt_off} sc0 sc1')
    a('s_waitcnt vmcnt(0)')
    a(f'v_readfirstlane_b32 s4, {v(vt+2)}')
    a(f's_cmp_lg_u32 s4, {n-1}')
    a(f's_cbranch_scc1 {lb}')
    a(f'global_store_dword {v(vt)}, {v(vt+1)}, {s(P_DBG,2)} offset:{go_off} sc1')
    a.label(lb)
    a('s_mov_b64 exec, -1')


def dbg_poll(a, vt, s_off, sleep):
    a(f'v_mov_b32 {v(vt)}, {s_off}')
    spin(a, [f'global_load_dword {v(vt+1)}, {v(vt)}, {s(P_DBG,2)} sc1'], 's_waitcnt vmcnt(0)', [f'v_cmp_ne_u32 vcc, 1, {v(vt+1)}'], sleep)


STAMPS = [False]
S_ST = 82


def stamp(a, slot, grp=1):
    if STAMPS[0] and (grp == 1 or grp == STAMPS[0]):
        a(f's_memrealtime {s(S_ST+2*slot,2)}')


def stamp_it(a, s_it, vals, slot0, grp=3):
    if STAMPS[0] == grp:
        a('s_memrealtime s[4:5]')
        a('s_waitcnt lgkmcnt(0)')
        for i, x in enumerate(vals):
            a(f's_cmp_eq_u32 {s(s_it)}, {x}')
            a(f's_cselect_b32 {s(S_ST+2*(slot0+i))}, s4, {s(S_ST+2*(slot0+i))}')


def stamp_init(a):
    if STAMPS[0]:
        for i in range(9):
            a(f's_mov_b32 {s(S_ST+2*i)}, 0')


def stamp_dump(a, vt):
    if not STAMPS[0]:
        return
    a('s_waitcnt lgkmcnt(0)')
    a(f'v_mov_b32 {v(vt)}, 0')
    for i in range(9):
        a(f'v_writelane_b32 {v(vt)}, {s(S_ST+2*i)}, {i}')
    a('s_lshl_b32 s3, s2, 3')
    a(f's_add_u32 s3, s3, {s(S_WAVE)}')
    a('s_lshl_b32 s3, s3, 6')
    a(f's_add_u32 s3, s3, {hex(WS_STAMP)}')
    a(f'v_lshlrev_b32 {v(vt+1)}, 2, {v(VL)}')
    a('s_mov_b64 exec, 0xffff')
    a(f'buffer_store_dword {v(vt)}, {v(vt+1)}, {s(SWS,4)}, s3 offen')
    a('s_mov_b64 exec, -1')
```

```python
from common import *

XSLOT = 16384
WBASE = 65536


def k0_of(a, mode):
    if mode == 0:
        a(f's_mov_b32 {s(S_K0)}, 0')
        return
    a(f's_and_b32 s3, {s(S_RB)}, 3')
    a('s_lshl_b32 s3, s3, 2')
    a('s_lshr_b32 s3, 0x8530, s3')
    a('s_and_b32 s3, s3, 15')
    if mode == 2:
        a('s_mov_b32 s3, 0')
    if mode != 3:
        a(f's_add_u32 s3, s3, {s(S_CT)}')
    a('s_mul_i32 s4, s3, 205')
    a('s_lshr_b32 s4, s4, 11')
    a('s_mul_i32 s4, s4, 10')
    a(f's_sub_u32 {s(S_K0)}, s3, s4')


def g1_loader(a, kmode, go):
    vb = 4
    t = vb + 16
    J0, J1, RA, DA, D = t + 6, V_J1, V_RA, t + 7, t + 8
    S_XK, S_WK, S_M, S_XO, S_IT, S_L = SL, SL + 1, SL + 2, SL + 3, SL + 4, SL + 5
    k0_of(a, kmode)
    a(f's_and_b32 {s(S_L)}, {s(S_WAVE)}, 1')
    a(f'v_lshrrev_b32 {v(t)}, 3, {v(VL)}')
    a(f'v_lshrrev_b32 {v(t+1)}, 4, {v(VL)}')
    a(f'v_xor_b32 {v(t+1)}, {v(t+1)}, {v(VL)}')
    a(f'v_and_b32 {v(t+1)}, 7, {v(t+1)}')
    a(f's_lshl_b32 s3, {s(S_RB)}, 1')
    a(f's_add_u32 s3, s3, {s(S_L)}')
    a(f's_mul_i32 s3, s3, {128*1280}')
    a(f'v_mul_u32_u24 {v(t+2)}, 1280, {v(t)}')
    a(f'v_add_u32 {v(t+2)}, s3, {v(t+2)}')
    a(f'v_lshl_add_u32 {v(vb)}, {v(t+1)}, 4, {v(t+2)}')
    a(f'v_xor_b32 {v(t+3)}, 64, {v(vb)}')
    for i in range(1, 8):
        a(f'v_add_u32 {v(vb+i)}, {i*8*1280-(i&3)*1024}, {v(vb if i % 2 == 0 else t+3)}')
    a(f'v_lshrrev_b32 {v(t+1)}, 3, {v(VL)}')
    a(f'v_and_b32 {v(t+1)}, 2, {v(t+1)}')
    a(f'v_xor_b32 {v(t+1)}, {v(t+1)}, {v(VL)}')
    a(f'v_and_b32 {v(t+1)}, 7, {v(t+1)}')
    a(f'v_mul_u32_u24 {v(t+2)}, 3456, {v(t)}')
    a(f's_lshl_b32 s3, {s(S_CT)}, 7')
    a(f'v_add_u32 {v(t+2)}, s3, {v(t+2)}')
    a(f'v_lshl_add_u32 {v(vb+8)}, {v(t+1)}, 4, {v(t+2)}')
    a(f'v_xor_b32 {v(t+3)}, 64, {v(vb+8)}')
    for i in range(1, 8):
        a(f'v_add_u32 {v(vb+8+i)}, {i*8*3456-(i&3)*1024}, {v(vb+8 if i % 2 == 0 else t+3)}')
    a(f's_lshl_b32 {s(S_XK)}, {s(S_K0)}, 7')
    a(f's_mul_i32 {s(S_WK)}, {s(S_K0)}, {64*3456}')
    a(f's_lshl_b32 {s(S_M)}, {s(S_L)}, 13')
    go(a)
    a(f's_cmp_eq_u32 {s(S_L)}, 1')
    a(f's_cselect_b32 {s(P_WG)}, {s(P_WU)}, {s(P_WG)}')
    a(f's_cselect_b32 {s(P_WG+1)}, {s(P_WU+1)}, {s(P_WG+1)}')
    srd(a, SW, P_WG, W_BYTES)
    srd(a, SX, P_X, X_BYTES)

    def ix(hs):
        if hs & 1:
            a(f's_add_u32 {s(S_XO)}, {s(S_XK)}, {64*1280}')
            so = S_XO
        else:
            so = S_XK
        for g in range(2):
            a(f's_add_u32 m0, {s(S_M)}, {(hs%4)*XSLOT+g*4096}')
            for i in range(4):
                a(f'buffer_load_dwordx4 {v(vb+4*g+i)}, {s(SX,4)}, {s(so)} offen offset:{i*1024} lds')
        if hs & 1:
            a(f's_add_u32 {s(S_XK)}, {s(S_XK)}, 128')
            a(f's_cmp_eq_u32 {s(S_XK)}, 1280')
            a(f's_cselect_b32 {s(S_XK)}, 0, {s(S_XK)}')

    def iw(b):
        for g in range(2):
            a(f's_add_u32 m0, {s(S_M)}, {WBASE+(b%2)*XSLOT+g*4096}')
            for i in range(4):
                a(f'buffer_load_dwordx4 {v(vb+8+4*g+i)}, {s(SW,4)}, {s(S_WK)} offen offset:{i*1024} lds')
        a(f's_add_u32 {s(S_WK)}, {s(S_WK)}, {64*3456}')
        a(f's_cmp_eq_u32 {s(S_WK)}, {640*3456}')
        a(f's_cselect_b32 {s(S_WK)}, 0, {s(S_WK)}')
    iw(0); ix(0); ix(1); iw(1); ix(2)
    srd(a, SWS, P_WS, WS_SIZE)
    stamp(a, 1)
    a(f'v_lshlrev_b32 {v(RA)}, 2, {v(VL)}')
    a(f'v_and_b32 {v(DA)}, 3, {v(VL)}')
    a(f'v_lshl_add_u32 {v(DA)}, {v(DA)}, 8, {v(RA)}')
    a(f'v_add_u32 {v(DA)}, {F_DONE}, {v(DA)}')
    a(f's_lshl_b32 s3, {s(S_L)}, 8')
    a(f's_add_u32 s3, s3, {F_READY}')
    a(f'v_add_u32 {v(RA)}, s3, {v(RA)}')
    a(f'v_mov_b32 {v(J0)}, 1')
    a(f'v_mov_b32 {v(J1)}, 1')
    a(f's_mov_b32 {s(S_IT)}, 4')

    def sync(cnt):
        a(f's_waitcnt vmcnt({cnt})')
        a(f'ds_write_b32 {v(RA)}, {v(J1)}')

    def free():
        spin(a, [f'ds_read_b32 {v(D)}, {v(DA)}'], 's_waitcnt lgkmcnt(0)', [f'v_cmp_gt_u32 vcc, {v(J0)}, {v(D)}'])
        a(f'v_mov_b32 {v(J0)}, {v(J1)}')
        a(f'v_add_u32 {v(J1)}, 1, {v(J1)}')
    sync(24)
    a(f'v_mov_b32 {v(J1)}, 2')
    a.label('ld_loop')
    for j in range(4):
        sync(16 if j & 1 else 8)
        free()
        if j % 2 == 0:
            iw(j // 2)
        ix(j + 3)
    stamp_it(a, S_IT, (4, 3, 2, 1), 3)
    a(f's_sub_u32 {s(S_IT)}, {s(S_IT)}, 1')
    a(f's_cmp_lg_u32 {s(S_IT)}, 0')
    a('s_cbranch_scc1 ld_loop')
    sync(8)
    free()
    ix(19)


def g1_loader_tail(a, extra):
    for cnt in (8, 0):
        if cnt == 0:
            a(f'v_mov_b32 {v(V_J1)}, 64')
        a(f's_waitcnt vmcnt({cnt+extra})')
        a(f'ds_write_b32 {v(V_RA)}, {v(V_J1)}')


class G1Regs:
    def __init__(self, base):
        b = base
        self.xa = b; b += 2
        self.wa = b; b += 2
        self.ha = b; b += 1
        self.cnt = b; b += 1
        self.fa = b; b += 1
        self.da = b; b += 1
        self.f = b; b += 1
        self.t = b; b += 3
        b = (b + 3) // 4 * 4
        self.B = b; b += 32
        self.A = [b, b + 32]; b += 64
        self.acc = b; b += 128
        self.end = b


def g1_addr(a, R):
    t = R.t
    a(f'v_and_b32 {v(t)}, 15, {v(VL)}')
    a(f'v_lshrrev_b32 {v(t+1)}, 4, {v(VL)}')
    a(f'v_lshrrev_b32 {v(t+2)}, 1, {v(t)}')
    a(f'v_xor_b32 {v(t+2)}, {v(t+1)}, {v(t+2)}')
    a(f'v_lshlrev_b32 {v(t+2)}, 4, {v(t+2)}')
    a(f'v_lshl_add_u32 {v(t)}, {v(t)}, 7, {v(t+2)}')
    a(f's_and_b32 s3, {s(S_WAVE)}, 1')
    a('s_lshl_b32 s3, s3, 13')
    a(f'v_add_u32 {v(R.xa)}, s3, {v(t)}')
    a(f'v_xor_b32 {v(R.xa+1)}, 64, {v(R.xa)}')
    a(f'v_bfe_u32 {v(t+2)}, {v(VL)}, 2, 2')
    a(f'v_lshl_add_u32 {v(t)}, {v(t+1)}, 3, {v(t+2)}')
    a(f'v_lshlrev_b32 {v(t)}, 7, {v(t)}')
    a(f'v_bfe_u32 {v(t+2)}, {v(VL)}, 3, 2')
    a(f's_and_b32 s3, {s(S_WAVE)}, 2')
    a(f'v_xor_b32 {v(t+2)}, s3, {v(t+2)}')
    a(f'v_lshl_add_u32 {v(t)}, {v(t+2)}, 5, {v(t)}')
    a(f'v_and_b32 {v(t+2)}, 3, {v(VL)}')
    a(f'v_lshl_add_u32 {v(t)}, {v(t+2)}, 3, {v(t)}')
    a(f'v_add_u32 {v(R.wa)}, {WBASE}, {v(t)}')
    a(f'v_xor_b32 {v(R.wa+1)}, 32, {v(R.wa)}')
    a(f'v_lshlrev_b32 {v(R.ha)}, 4, {v(VL)}')
    a(f'v_lshlrev_b32 {v(t)}, 2, {v(VL)}')
    a(f'v_lshrrev_b32 {v(t+1)}, 5, {v(VL)}')
    a(f'v_lshl_add_u32 {v(R.fa)}, {v(t+1)}, 8, {v(t)}')
    a(f'v_add_u32 {v(R.fa)}, {F_READY}, {v(R.fa)}')
    a(f's_lshl_b32 s3, {s(S_WAVE)}, 8')
    a(f's_add_u32 s3, s3, {F_DONE}')
    a(f'v_add_u32 {v(R.da)}, s3, {v(t)}')
    a(f'v_mov_b32 {v(R.cnt)}, 1')
    for i in range(0, 128, 2):
        a(f'v_mov_b64 {v(R.acc+i,2)}, 0')


def g1_main(a, R, cold):
    S_IT = SL

    def xr(n):
        hs, r = n >> 2, n & 3
        return [f'ds_read_b128 {v(R.B+8*(n%4)+4*k,4)}, {v(R.xa+k)} offset:{(hs%4)*XSLOT+r*2048}' for k in range(2)]

    def wr(b):
        return [f'ds_read_b64_tr_b16 {v(R.A[b&1]+8*m+4*k+2*h,2)}, {v(R.wa+(m&1))} offset:{(b%2)*XSLOT+(m>>1)*8192+k*4096+h*512}'
                for m in range(4) for k in range(2) for h in range(2)]
    rdf = f'ds_read_b32 {v(R.f)}, {v(R.fa)}'
    spin(a, [rdf], 's_waitcnt lgkmcnt(0)', [f'v_cmp_eq_u32 vcc, 0, {v(R.f)}'])
    stamp(a, 1)
    w0 = wr(0)
    a.extend(w0[:4] + xr(0) + w0[4:12])
    a('s_waitcnt lgkmcnt(8)')
    a.extend(w0[12:] + xr(1))
    a(f's_mov_b32 {s(S_IT)}, 5')
    a('s_waitcnt lgkmcnt(0)')
    a(f'ds_write_b32 {v(R.da)}, {v(R.cnt)}')
    pend = []
    body = Asm()
    for n in range(32):
        o = body if n >= 16 else Asm()
        hs, r = n >> 2, n & 3
        b = hs >> 1
        rg = 4 * (hs & 1) + r
        rd = [(x, ('x', n + 2)) for x in xr(n + 2)]
        ph = (n - 2) % 8
        bn = (n - 2) // 8 + 1
        if ph < 4:
            rd += [(x, ('w', bn)) for x in wr(bn)[4 * ph:4 * ph + 4]]
        if r == 1:
            rd += [(rdf, ('f', hs))]
        if r == 2:
            cnt = 0
        else:
            need = [i for i, tg in enumerate(pend) if tg == ('x', n) or tg == ('w', b)]
            cnt = len(pend) - 1 - max(need) if need else None
        if cnt is not None and pend:
            o(f's_waitcnt lgkmcnt({cnt})')
            pend = pend[len(pend) - cnt:] if cnt else []
        k = 0
        for m in range(4):
            acc = R.acc + 64 * (m >> 1) + 8 * rg + 4 * (m & 1)
            for kk in range(2):
                o(f'v_mfma_f32_16x16x32_bf16 {v(acc,4)}, {v(R.A[b&1]+8*m+4*kk,4)}, {v(R.B+8*(n%4)+4*kk,4)}, {v(acc,4)}')
                if r == 2 and k == 0:
                    o(f'v_cmp_le_u32 vcc, {v(R.f)}, {v(R.cnt)}')
                    o(f'v_add_u32 {v(R.cnt)}, 1, {v(R.cnt)}')
                    o(f'ds_write_b32 {v(R.da)}, {v(R.cnt)}'); pend.append(('d', hs))
                elif r == 2 and k == 1:
                    o(f's_cbranch_vccnz g1_slow{hs&3}')
                    o.label(f'g1_back{hs&3}')
                    x, tg = rd.pop(0); o(x); pend.append(tg)
                elif rd:
                    x, tg = rd.pop(0); o(x); pend.append(tg)
                if n == 31 and k == 5:
                    o(f's_sub_u32 {s(S_IT)}, {s(S_IT)}, 1')
                if n == 31 and k == 6:
                    o(f's_cmp_lg_u32 {s(S_IT)}, 0')
                k += 1
        assert not rd
    a.label('g1_loop')
    a.extend(body)
    a('s_cbranch_scc1 g1_loop')
    for h in range(4):
        cold.label(f'g1_slow{h}')
        spin(cold, [rdf], 's_waitcnt lgkmcnt(0)', [f'v_cmp_lt_u32 vcc, {v(R.f)}, {v(R.cnt)}'])
        cold(f's_branch g1_back{h}')


def g1_epilogue(a, R):
    a(f's_and_b32 s3, {s(S_WAVE)}, 1')
    a(f's_lshl_b32 s4, {s(S_RB)}, 1')
    a('s_add_u32 s3, s3, s4')
    a('s_mul_i32 s3, s3, 108')
    a(f's_lshl_b32 s4, {s(S_CT)}, 1')
    a('s_add_u32 s3, s3, s4')
    a(f's_lshr_b32 s4, {s(S_WAVE)}, 1')
    a('s_add_u32 s3, s3, s4')
    a('s_lshl_b32 s4, s3, 12')
    a(f's_add_u32 s5, s4, {54*4096}')
    a('s_waitcnt lgkmcnt(0)')
    for rg in range(8):
        g, u = R.acc + 8 * rg, R.acc + 64 + 8 * rg
        p = R.A[0] + 4 * rg
        for i in range(0, 8, 2):
            a(f'v_pk_mul_f32 {v(g+i,2)}, {v(g+i,2)}, {v(u+i,2)}')
        for i in range(4):
            a(f'v_cvt_pk_bf16_f32 {v(p+i)}, {v(g+2*i)}, {v(g+2*i+1)}')
        a(f'buffer_store_dwordx4 {v(p,4)}, {v(R.ha)}, {s(SWS,4)}, {s(4+(rg>>2))} offen offset:{(rg&3)*1024} sc1')
    a(f'v_add_u32 {v(R.cnt)}, 1, {v(R.cnt)}')
    a(f'ds_write_b32 {v(R.da)}, {v(R.cnt)}')
    stamp(a, 2)
    t = R.B
    a(f'v_mov_b32 {v(t)}, {F_MISC+M_HCNT}')
    a(f'v_mov_b32 {v(t+1)}, 1')
    a('s_waitcnt vmcnt(0)')
    a('s_mov_b64 exec, 1')
    a(f'ds_add_rtn_u32 {v(t+2)}, {v(t)}, {v(t+1)}')
    a('s_mov_b64 exec, -1')
    a('s_waitcnt lgkmcnt(0)')
    a(f'v_readfirstlane_b32 s3, {v(t+2)}')
    a('s_cmp_lg_u32 s3, 3')
    a('s_cbranch_scc1 g1_nosig')
    lds_flag_wait(a, t, M_Z)
    a(f's_lshl_b32 s3, {s(S_RB)}, 5')
    a(f's_add_u32 s3, s3, {s(S_CT)}')
    a('s_lshl_b32 s3, s3, 6')
    a(f's_add_u32 s3, s3, {hex(FL_H)}')
    flag_store(a, t, 's3')
    a.label('g1_nosig')
```

```python
from common import *
from g1 import g1_loader_tail

HA, LA = 2, 3
ACC, HB, WB = 4, 84, 132
PT = 254
FA = 212
PW = 230
PART = 20480
TAILWAIT = [10]
AT_G = 80 * 144
S_N, S_WB, S_WE, S_WO, S_HB, S_HE, S_HO = 68, 69, 70, 71, 72, 73, 74


def adv(a, o, b, e, step):
    a(f's_add_u32 {s(o)}, {s(o)}, {step}')
    a(f's_cmp_eq_u32 {s(o)}, {s(e)}')
    a(f's_cselect_b32 {s(o)}, {s(b)}, {s(o)}')


def g2_pre(a):
    a(f's_and_b32 s5, {s(S_WAVE)}, 3')
    a(f's_lshr_b32 s3, s5, 1')
    a(f's_sub_u32 {s(S_N)}, 14, s3')
    a(f's_mul_i32 {s(SL)}, s5, 14')
    a('s_cmp_eq_u32 s5, 3')
    a(f's_subb_u32 {s(SL)}, {s(SL)}, 0')
    a(f's_mul_i32 s3, {s(S_CG)}, 13')
    a('s_lshr_b32 s3, s3, 3')
    a(f's_and_b32 s4, {s(S_R2)}, 3')
    a(f's_mul_i32 s4, s4, {s(S_N)}')
    a('s_lshr_b32 s4, s4, 2')
    a('s_add_u32 s3, s3, s4')
    a(f's_sub_u32 s4, s3, {s(S_N)}')
    a('s_cselect_b32 s3, s3, s4')
    a(f's_mul_i32 s4, {s(S_CG)}, 54')
    a(f's_add_u32 s4, s4, {s(SL)}')
    a('s_mul_i32 s4, s4, 5120')
    a(f's_add_u32 {s(S_WB)}, s4, {hex(WS_WP)}')
    a(f's_mul_i32 s4, {s(S_N)}, 5120')
    a(f's_add_u32 {s(S_WE)}, {s(S_WB)}, s4')
    a('s_mul_i32 s4, s3, 5120')
    a(f's_add_u32 {s(S_WO)}, {s(S_WB)}, s4')
    a(f's_mul_i32 s4, {s(S_R2)}, 54')
    a(f's_add_u32 s4, s4, {s(SL)}')
    a(f's_lshl_b32 {s(S_HB)}, s4, 12')
    a(f's_lshl_b32 s4, {s(S_N)}, 12')
    a(f's_add_u32 {s(S_HE)}, {s(S_HB)}, s4')
    a('s_lshl_b32 s4, s3, 12')
    a(f's_add_u32 {s(S_HO)}, {s(S_HB)}, s4')
    a(f'v_lshlrev_b32 {v(HA)}, 4, {v(VL)}')
    a(f's_mul_i32 {s(SL+1)}, s5, {PART}')
    a(f'v_add_u32 {v(LA)}, {s(SL+1)}, {v(HA)}')
    a(f's_cmp_lg_u32 {s(S_SIDE)}, 0')
    a('s_cbranch_scc1 g2_wgo')
    a(f's_cmp_ge_u32 {s(S_WAVE)}, 6')
    a('s_cbranch_scc1 g2_z')
    a(f'v_lshlrev_b32 {v(0)}, 3, {v(VL)}')
    a(f'v_add_u32 {v(0)}, {F_READY}, {v(0)}')
    spin(a, [f'ds_read_b32 {v(PT)}, {v(0)}'], 's_waitcnt lgkmcnt(0)', [f'v_cmp_gt_u32 vcc, 19, {v(PT)}'], 4)
    a('s_branch g2_wgo')
    a.label('g2_z')
    lds_flag_wait(a, PT, M_Z, 1)
    a.label('g2_wgo')
    stamp(a, 4, 2)
    for j in range(6):
        a(f's_add_u32 s3, {s(S_WO)}, 4096')
        for cb in range(5):
            a(wload(j, cb))
        adv(a, S_WO, S_WB, S_WE, 5120)
    a(f's_cmp_lg_u32 {s(S_SIDE)}, 0')
    a('s_cbranch_scc1 g2_dma')
    a(f's_cmp_lt_u32 {s(S_WAVE)}, 6')
    a('s_cbranch_scc1 g2_ring')
    g1_loader_tail(a, 30)
    a.label('g2_ring')
    a(f'v_and_b32 {v(0)}, 3, {v(VL)}')
    a(f'v_lshlrev_b32 {v(0)}, 8, {v(0)}')
    a(f'v_lshl_add_u32 {v(0)}, {v(VL)}, 2, {v(0)}')
    a(f'v_add_u32 {v(0)}, {F_DONE}, {v(0)}')
    spin(a, [f'ds_read_b32 {v(PT)}, {v(0)}'], 's_waitcnt lgkmcnt(0)', [f'v_cmp_gt_u32 vcc, 22, {v(PT)}'], 1)
    a.label('g2_dma')
    a(f's_mov_b32 m0, {s(SL+1)}')
    a(f's_mov_b32 {s(SL+2)}, 4')
    a.label('g2_dma_l')
    a(f's_add_u32 s3, {s(S_WO)}, 1024')
    a(f'buffer_load_dwordx4 {v(HA)}, {s(SWS,4)}, {s(S_WO)} offen sc1 lds')
    a('s_add_u32 m0, m0, 1024')
    adv(a, S_WO, S_WB, S_WE, 5120)
    for i in range(4):
        a(f'buffer_load_dwordx4 {v(HA)}, {s(SWS,4)}, s3 offen offset:{i*1024} sc1 lds')
    a('s_add_u32 m0, m0, 4096')
    a(f's_sub_u32 {s(SL+2)}, {s(SL+2)}, 1')
    a(f's_cmp_lg_u32 {s(SL+2)}, 0')
    a('s_cbranch_scc1 g2_dma_l')
    stamp(a, 5, 2)
    srd(a, SO, P_OUT, X_BYTES)
    a(f'v_min_u32 {v(0)}, 6, {v(VL)}')
    a(f'v_lshlrev_b32 {v(0)}, 6, {v(0)}')
    a(f's_lshr_b32 s3, {s(SL)}, 1')
    a(f's_lshl_b32 s4, {s(S_X)}, 5')
    a('s_add_u32 s3, s3, s4')
    a('s_lshl_b32 s3, s3, 6')
    a(f's_add_u32 s3, s3, {hex(FL_H)}')
    spin(a, [f'buffer_load_dword {v(PT)}, {v(0)}, {s(SWS,4)}, s3 offen sc1'], 's_waitcnt vmcnt(0)', [f'v_cmp_ne_u32 vcc, 1, {v(PT)}'], 1)
    stamp(a, 6, 2)


def wset(j):
    return WB + 20 * (j if j < 6 else 4 + (j & 1) if j < 10 else j - 10)


def wload(j, cb):
    so = 's3' if cb == 4 else s(S_WO)
    return f'buffer_load_dwordx4 {v(wset(j)+4*cb,4)}, {v(HA)}, {s(SWS,4)}, {so} offen offset:{(cb&3)*1024} sc1'


def hload(j, rb):
    return f'buffer_load_dwordx4 {v(HB+16*(j%3)+4*rb,4)}, {v(HA)}, {s(SWS,4)}, {s(S_HO)} offen offset:{rb*1024} sc1'


def part_addr(a):
    t = PW + 1
    a(f'v_and_b32 {v(PW)}, 15, {v(VL)}')
    a(f'v_lshrrev_b32 {v(t)}, 2, {v(VL)}')
    a(f'v_lshrrev_b32 {v(t+1)}, 4, {v(VL)}')
    a(f'v_xor_b32 {v(t)}, {v(t)}, {v(t+1)}')
    a(f'v_and_b32 {v(t)}, 3, {v(t)}')
    a(f'v_mul_u32_u24 {v(PW)}, 320, {v(PW)}')
    a(f'v_lshl_add_u32 {v(PW)}, {v(t)}, 4, {v(PW)}')
    a(f'v_add_u32 {v(PW)}, {s(SL+1)}, {v(PW)}')


def g2_main(a):
    q = []
    for j in range(3):
        for rb in range(4):
            a(hload(j, rb)); q.append(('h', j, rb))
        adv(a, S_HO, S_HB, S_HE, 4096)
    wl = [(j, cb) for j in range(10, 14) for cb in range(5)]
    x = Asm()
    part_addr(x)
    final_addr(x, S_WAVE, FA)
    extra = list(x.lines)

    def pw(rb, cb):
        return f'ds_write_b128 {v(PW)}, {v(ACC+4*(rb*5+cb),4)} offset:{rb*16*320+cb*64}'
    for j in range(14):
        if j == 13:
            a(f's_cmp_eq_u32 {s(S_N)}, 13')
            a('s_cbranch_scc1 g2_short')
        fill = []
        if 1 <= j <= 10:
            for _ in range(2):
                wj, cb = wl.pop(0)
                L = []
                if cb == 0:
                    if wj == 13:
                        L += [f's_cmp_eq_u32 {s(S_N)}, 13', f's_cselect_b32 {s(S_WO)}, {hex(WS_SIZE)}, {s(S_WO)}']
                    L += [f's_add_u32 s3, {s(S_WO)}, 4096']
                L.append(wload(wj, cb))
                if cb == 4 and wj < 13:
                    y = Asm(); adv(y, S_WO, S_WB, S_WE, 5120); L += y.lines
                fill.append((L, ('w', wj, cb)))
        if 5 <= j <= 8:
            for cb in range(5):
                fill.append(([f'ds_read_b128 {v(wset(j+1)+4*cb,4)}, {v(LA)} offset:{(j-5)*5120+cb*1024}'], None))
        if j in (10, 11, 12):
            n = (len(extra) + 12 - j) // (13 - j)
            for _ in range(n):
                fill.append(([extra.pop(0)], None))
        if j == TAILWAIT[0]:
            y = Asm(); lds_flag_set(y, PT, M_TAIL)
            fill.append((y.lines, None))
        if j == 10:
            a(f's_cmp_eq_u32 {s(S_N)}, 13')
            a(f's_cselect_b32 {s(S_HO)}, {hex(WS_SIZE)}, {s(S_HO)}')
        if 6 <= j <= 9:
            a('s_waitcnt lgkmcnt(0)')
        for rb in range(4):
            need = [i for i, tg in enumerate(q) if tg == ('h', j, rb) or tg[0:2] == ('w', j)]
            if need:
                cnt = len(q) - 1 - max(need)
                a(f's_waitcnt vmcnt({cnt})')
                q = q[len(q) - cnt:] if cnt else []
            for cb in range(5):
                acc = ACC + 4 * (rb * 5 + cb)
                cc = '0' if j == 0 else v(acc, 4)
                a(f'v_mfma_f32_16x16x32_bf16 {v(acc,4)}, {v(wset(j)+4*cb,4)}, {v(HB+16*(j%3)+4*rb,4)}, {cc}')
                if j == 13:
                    if rb:
                        a(pw(rb - 1, cb))
                elif fill:
                    L, tg = fill.pop(0)
                    a.extend(L)
                    if tg:
                        q.append(tg)
            if j + 3 < 14:
                a(hload(j + 3, rb)); q.append(('h', j + 3, rb))
        assert not fill
        if j + 3 < 13:
            adv(a, S_HO, S_HB, S_HE, 4096)
    assert not extra and not wl
    a('s_branch g2_last')
    a.label('g2_short')
    for rb in range(3):
        for cb in range(5):
            a(pw(rb, cb))
    a.label('g2_last')
    for cb in range(5):
        a(pw(3, cb))


def final_addr(a, s_item, f):
    pa, pb, ta, ga, oa, idx, rb = f, f + 1, f + 2, f + 3, f + 4, f + 5, f + 6
    a(f'v_lshrrev_b32 {v(idx)}, 4, {v(VL)}')
    a(f's_lshl_b32 s4, {s(s_item)}, 2')
    a(f'v_add_u32 {v(idx)}, s4, {v(idx)}')
    a(f'v_mul_u32_u24 {v(rb)}, 205, {v(idx)}')
    a(f'v_lshrrev_b32 {v(rb)}, 11, {v(rb)}')
    a(f'v_mul_u32_u24 {v(pa)}, 10, {v(rb)}')
    a(f'v_sub_u32 {v(idx)}, {v(idx)}, {v(pa)}')
    a(f'v_and_b32 {v(ga)}, 15, {v(VL)}')
    a(f'v_lshl_add_u32 {v(ga)}, {v(rb)}, 4, {v(ga)}')
    a(f'v_bfe_u32 {v(ta)}, {v(VL)}, 2, 2')
    a(f'v_lshlrev_b32 {v(pb)}, 1, {v(idx)}')
    a(f'v_xor_b32 {v(pb)}, {v(pb)}, {v(ta)}')
    a(f'v_mul_u32_u24 {v(pa)}, 320, {v(ga)}')
    a(f'v_lshl_add_u32 {v(pa)}, {v(pb)}, 4, {v(pa)}')
    a(f'v_xor_b32 {v(pb)}, 16, {v(pa)}')
    a(f's_mul_i32 s4, {s(S_R2)}, {64*1280}')
    a(f'v_mul_u32_u24 {v(oa)}, 1280, {v(ga)}')
    a(f'v_lshl_add_u32 {v(oa)}, {v(idx)}, 4, {v(oa)}')
    a(f'v_add_u32 {v(oa)}, s4, {v(oa)}')
    a(f's_mul_i32 s4, {s(S_CG)}, 160')
    a(f'v_add_u32 {v(oa)}, s4, {v(oa)}')
    a(f's_add_u32 s4, {s(S_AT)}, {AT_G}')
    a(f'v_lshl_add_u32 {v(ga)}, {v(ga)}, 2, s4')
    a(f'v_lshl_add_u32 {v(ta)}, {v(idx)}, 3, {v(ta)}')
    a(f'v_mul_u32_u24 {v(ta)}, 144, {v(ta)}')
    a(f'v_lshl_add_u32 {v(ta)}, {v(rb)}, 5, {v(ta)}')
    a(f'v_and_b32 {v(rb)}, 3, {v(VL)}')
    a(f'v_lshl_add_u32 {v(ta)}, {v(rb)}, 3, {v(ta)}')
    a(f'v_add_u32 {v(ta)}, {s(S_AT)}, {v(ta)}')


def final_reads(a, f, d):
    for w in range(4):
        for h in range(2):
            a(f'ds_read_b128 {v(d+8*w+4*h,4)}, {v(f+h)} offset:{w*PART}')
    a(f'ds_read_b64_tr_b16 {v(d+32,2)}, {v(f+2)}')
    a(f'ds_read_b64_tr_b16 {v(d+34,2)}, {v(f+2)} offset:{4*144}')
    a(f'ds_read_b32 {v(d+36)}, {v(f+3)}')


def final_math(a, f, d):
    A, g = d + 32, d + 36
    a('s_waitcnt lgkmcnt(7)')
    for i in range(0, 8, 2):
        a(f'v_pk_add_f32 {v(d+i,2)}, {v(d+i,2)}, {v(d+8+i,2)}')
    a('s_waitcnt lgkmcnt(3)')
    for i in range(0, 8, 2):
        a(f'v_pk_add_f32 {v(d+16+i,2)}, {v(d+16+i,2)}, {v(d+24+i,2)}')
    for i in range(0, 8, 2):
        a(f'v_pk_add_f32 {v(d+i,2)}, {v(d+i,2)}, {v(d+16+i,2)}')
    a('s_waitcnt lgkmcnt(0)')
    for i in range(8):
        if i & 1:
            a(f'v_and_b32 {v(d+8+i)}, 0xffff0000, {v(A+i//2)}')
        else:
            a(f'v_lshlrev_b32 {v(d+8+i)}, 16, {v(A+i//2)}')
    for i in range(0, 8, 2):
        a(f'v_pk_add_f32 {v(d+8+i,2)}, {v(d+8+i,2)}, {v(d+i,2)} neg_lo:[0,1] neg_hi:[0,1]')
    for i in range(0, 8, 2):
        a(f'v_pk_fma_f32 {v(d+i,2)}, {v(g,2)}, {v(d+8+i,2)}, {v(d+i,2)} op_sel_hi:[0,1,1]')
    for i in range(4):
        a(f'v_cvt_pk_bf16_f32 {v(d+16+i)}, {v(d+2*i)}, {v(d+2*i+1)}')
    a(f'buffer_store_dwordx4 {v(d+16,4)}, {v(f+4)}, {s(SO,4)}, 0 offen')


def atload(a):
    t, ad, at = 4, 7, 8
    srd(a, SO, P_OUT, X_BYTES)
    final_addr(a, S_WAVE, FA)
    a(f's_add_u32 {s(SL)}, {s(S_WAVE)}, 8')
    final_addr(a, SL, FA + 8)
    a(f's_lshl_b32 s3, {s(S_WAVE)}, 6')
    a(f'v_add_u32 {v(t)}, s3, {v(VL)}')
    a(f'v_lshrrev_b32 {v(t+1)}, 3, {v(t)}')
    a(f'v_and_b32 {v(t)}, 7, {v(t)}')
    a(f'v_lshlrev_b32 {v(t)}, 4, {v(t)}')
    a(f'v_mul_u32_u24 {v(ad)}, 144, {v(t+1)}')
    a(f'v_add3_u32 {v(ad)}, {v(ad)}, {v(t)}, {s(S_AT)}')
    a(f'v_lshl_add_u32 {v(t)}, {v(t+1)}, 12, {v(t)}')
    lds_flag_wait(a, PT, M_Z, 2)
    a(f's_lshl_b32 s3, {s(S_CG)}, 5')
    a(f's_add_u32 s3, s3, {s(S_R2)}')
    a('s_lshl_b32 s3, s3, 7')
    a(f's_add_u32 s3, s3, {hex(FL_GA)}')
    a(f'v_mov_b32 {v(PT)}, 1')
    spin(a, [f's_buffer_load_dword s4, {s(SWS,4)}, s3 glc'], 's_waitcnt lgkmcnt(0)', [f'v_cmp_ne_u32 vcc, s4, {v(PT)}'], 2)
    stamp(a, 5, 2)
    if TAILWAIT[0]:
        lds_flag_wait(a, PT, M_TAIL, 2)
    stamp(a, 6, 2)
    a(f's_mul_i32 s4, {s(S_CG)}, {80*4096}')
    a(f's_lshl_b32 s3, {s(S_R2)}, 7')
    a('s_add_u32 s4, s4, s3')
    a(f's_add_u32 s4, s4, {hex(WS_AT)}')
    for k in range(2):
        a(f'buffer_load_dwordx4 {v(at+4*k,4)}, {v(t)}, {s(SWS,4)}, s4 offen sc1')
        a(f's_add_u32 s4, s4, {32*4096}')
    a(f's_cmp_ge_u32 {s(S_WAVE)}, 2')
    a('s_cbranch_scc1 at_g')
    a(f'buffer_load_dwordx4 {v(at+8,4)}, {v(t)}, {s(SWS,4)}, s4 offen sc1')
    a('s_branch at_w')
    a.label('at_g')
    a(f's_lshl_b32 s3, {s(S_R2)}, 8')
    a(f's_add_u32 s3, s3, {hex(WS_G)}')
    a(f'v_lshlrev_b32 {v(t+1)}, 2, {v(VL)}')
    a(f'buffer_load_dword {v(at+8)}, {v(t+1)}, {s(SWS,4)}, s3 offen sc1')
    a.label('at_w')
    a(f's_cmp_eq_u32 {s(S_SIDE)}, 0')
    a('s_cbranch_scc1 at_free')
    lds_flag_wait(a, PT, M_CDONE + 16, 2, 2)
    a.label('at_free')
    a('s_waitcnt vmcnt(0)')
    a(f'ds_write_b128 {v(ad)}, {v(at,4)}')
    a(f'ds_write_b128 {v(ad)}, {v(at+4,4)} offset:{32*144}')
    a(f's_cmp_ge_u32 {s(S_WAVE)}, 2')
    a('s_cbranch_scc1 at_gw')
    a(f'ds_write_b128 {v(ad)}, {v(at+8,4)} offset:{64*144}')
    a('s_branch final')
    a.label('at_gw')
    a(f's_add_u32 s3, {s(S_AT)}, {AT_G}')
    a(f'v_add_u32 {v(t+1)}, s3, {v(t+1)}')
    a(f'ds_write_b32 {v(t+1)}, {v(at+8)}')


def final(a):
    a.label('final')
    stamp(a, 7, 2)
    a('s_waitcnt lgkmcnt(0)')
    a('s_barrier')
    final_reads(a, FA, 4)
    final_math(a, FA, 4)
    a(f's_cmp_ge_u32 {s(S_WAVE)}, 2')
    a('s_cbranch_scc1 fin_done')
    final_reads(a, FA + 8, 44)
    final_math(a, FA + 8, 44)
    a.label('fin_done')
```

```python
from common import *

STG = 40960
GW_LDS = FB


def side_prep(a, go):
    vb = 4
    t = vb + 4
    S_WV, S_BASE, S_SO, S_IT, S_WO, S_N = SL, SL + 1, SL + 2, SL + 3, SL + 4, SL + 5
    S_PO = 51
    a(f's_and_b32 s3, {s(S_X)}, 1')
    a('s_lshl_b32 s3, s3, 2')
    a(f's_lshr_b32 s4, {s(S_X)}, 1')
    a('s_add_u32 s3, s3, s4')
    a(f's_lshl2_add_u32 s3, s3, {s(S_IDX)}')
    a('s_sub_u32 s3, s3, 27')
    a(f's_add_u32 s4, {s(S_X)}, 32')
    a(f's_cmp_eq_u32 {s(S_IDX)}, 31')
    a('s_cselect_b32 s3, s4, s3')
    a(f's_and_b32 s4, {s(S_WAVE)}, 1')
    a(f's_lshl1_add_u32 {s(S_WV)}, s3, s4')
    a(f's_mul_i32 {s(S_BASE)}, s4, {STG}')
    a(f's_mul_i32 s3, {s(S_WV)}, 57')
    a('s_lshr_b32 s3, s3, 10')
    a('s_mul_i32 s4, s3, 18')
    a(f's_sub_u32 s4, {s(S_WV)}, s4')
    a('s_mul_i32 s4, s4, 3')
    a(f's_mov_b32 {s(S_N)}, 3')
    a(f's_cmp_lt_u32 {s(S_WV)}, 64')
    a('s_cbranch_scc1 sd_share')
    a(f's_sub_u32 s4, {s(S_WV)}, 58')
    a(f's_sub_u32 s5, {s(S_WV)}, 69')
    a('s_cselect_b32 s4, s4, s5')
    a('s_cselect_b32 s3, 3, 4')
    a('s_mul_i32 s4, s4, 5')
    a(f's_sub_u32 {s(S_N)}, 54, s4')
    a(f's_min_u32 {s(S_N)}, {s(S_N)}, 5')
    a.label('sd_share')
    a(f's_mul_i32 {s(S_WO)}, s4, {32*1280}')
    a('s_lshl_b32 s5, s3, 8')
    a(f's_add_u32 {s(S_WO)}, {s(S_WO)}, s5')
    a(f's_mul_i32 {s(S_PO)}, s4, 5120')
    a(f's_add_u32 {s(S_PO)}, {s(S_PO)}, {hex(WS_WP)}')
    a('s_lshl_b32 s5, s3, 3')
    HA = t + 4
    V, PO = 64, 72
    a(f'v_lshlrev_b32 {v(HA)}, 4, {v(VL)}')
    for j in range(8):
        a('s_mul_i32 s3, s5, 205')
        a('s_lshr_b32 s3, s3, 10')
        a(f's_mul_i32 s3, s3, {53*5}')
        a('s_add_u32 s3, s3, s5')
        a('s_lshl_b32 s3, s3, 10')
        a(f'v_add_u32 {v(PO+j)}, s3, {v(HA)}')
        if j < 7:
            a('s_add_u32 s5, s5, 1')
    a(f'v_lshrrev_b32 {v(t)}, 4, {v(VL)}')
    a(f'v_bfe_u32 {v(t+1)}, {v(VL)}, 1, 3')
    a(f'v_xor_b32 {v(t+1)}, {v(t+1)}, {v(t)}')
    a(f'v_lshlrev_b32 {v(t+1)}, 5, {v(t+1)}')
    a(f'v_and_b32 {v(t+2)}, 1, {v(VL)}')
    a(f'v_lshl_add_u32 {v(t+1)}, {v(t+2)}, 4, {v(t+1)}')
    a(f'v_mul_u32_u24 {v(t)}, 1280, {v(t)}')
    a(f'v_add_u32 {v(V)}, {v(t)}, {v(t+1)}')
    a(f'v_xor_b32 {v(t+3)}, 128, {v(V)}')
    for i in range(1, 8):
        a(f'v_add_u32 {v(V+i)}, {i*4*1280-(i&3)*1024}, {v(V if i % 2 == 0 else t+3)}')
    a(f'v_lshrrev_b32 {v(t)}, 3, {v(VL)}')
    a(f'v_lshrrev_b32 {v(t+1)}, 4, {v(VL)}')
    a(f'v_xor_b32 {v(t+1)}, {v(t+1)}, {v(VL)}')
    a(f'v_and_b32 {v(t+1)}, 7, {v(t+1)}')
    a(f'v_mul_u32_u24 {v(t+2)}, 1280, {v(t)}')
    a(f'v_lshl_add_u32 {v(vb)}, {v(t+1)}, 4, {v(t+2)}')
    a(f'v_xor_b32 {v(t+3)}, 64, {v(vb)}')
    for i in range(1, 4):
        a(f'v_add_u32 {v(vb+i)}, {i*8*1280-i*1024}, {v(vb if i % 2 == 0 else t+3)}')
    a(f's_mul_i32 {s(S_SO)}, {s(S_WV)}, {32*1280}')
    go(a)
    srd(a, SX, P_X, X_BYTES)
    srd(a, SWS, P_WS, WS_SIZE)
    srd(a, SW, P_WD, W_BYTES)

    def wchunk():
        for g in range(2):
            for i in range(4):
                a(f'buffer_load_dwordx4 {v(V+4*g+i)}, {s(SW,4)}, {s(S_WO)} offen offset:{i*1024} lds')
            a('s_add_u32 m0, m0, 4096')
        a(f's_add_u32 {s(S_WO)}, {s(S_WO)}, {32*1280}')

    def xchunk(slot):
        a(f's_add_u32 m0, {s(S_BASE)}, {XR+slot*4096}')
        for i in range(4):
            a(f'buffer_load_dwordx4 {v(vb+i)}, {s(SX,4)}, {s(S_SO)} offen offset:{i*1024} lds')
        a(f's_add_u32 {s(S_SO)}, {s(S_SO)}, 128')
    XR = 24576
    a(f's_cmp_lt_u32 {s(S_WV)}, 64')
    a('s_cbranch_scc1 sd_x')
    a(f's_mov_b32 m0, {s(S_BASE)}')
    a(f's_mov_b32 {s(S_IT)}, {s(S_N)}')
    a.label('sd_wld')
    wchunk()
    a(f's_sub_u32 {s(S_IT)}, {s(S_IT)}, 1')
    a(f's_cmp_lg_u32 {s(S_IT)}, 0')
    a('s_cbranch_scc1 sd_wld')
    a('s_waitcnt vmcnt(0)')
    a('s_branch sd_pack')
    a.label('sd_x')
    srd(a, SO, P_GW, 1280)
    a(f's_mov_b32 m0, {GW_LDS}')
    a(f'buffer_load_dwordx4 {v(HA)}, {s(SO,4)}, 0 offen lds')
    a('s_mov_b64 exec, 0xffff')
    a(f'buffer_load_dwordx4 {v(HA)}, {s(SO,4)}, 0 offen offset:1024 lds')
    a('s_mov_b64 exec, -1')
    q = []
    for c in range(4):
        xchunk(c); q += [('x', c)] * 4
    stamp(a, 1)
    Z = t + 8
    assert Z % 4 == 0
    for i in range(4):
        a(f'v_mov_b32 {v(Z+i)}, 0')
    a(f's_lshl_b32 s3, {s(S_WV)}, 10')
    a(f's_add_u32 s3, s3, {hex(WS_FL)}')
    a(f'buffer_store_dwordx4 {v(Z,4)}, {v(HA)}, {s(SWS,4)}, s3 offen sc1'); q.append('z')
    RA, XA, GA, OA = Z + 4, Z + 8, Z + 10, Z + 11
    a(f's_add_u32 s4, {s(S_BASE)}, {XR}')
    a(f'v_bfe_u32 {v(t)}, {v(VL)}, 3, 1')
    a(f'v_bfe_u32 {v(t+1)}, {v(VL)}, 4, 1')
    a(f'v_lshl_add_u32 {v(t)}, {v(t+1)}, 2, {v(t)}')
    a(f'v_bfe_u32 {v(t+1)}, {v(VL)}, 1, 1')
    a(f'v_xor_b32 {v(t)}, {v(t)}, {v(t+1)}')
    a(f'v_lshlrev_b32 {v(t)}, 4, {v(t)}')
    a(f'v_and_b32 {v(t+1)}, 1, {v(VL)}')
    a(f'v_lshl_add_u32 {v(t)}, {v(t+1)}, 3, {v(t)}')
    a(f'v_lshrrev_b32 {v(t+1)}, 4, {v(VL)}')
    a(f'v_lshl_add_u32 {v(t)}, {v(t+1)}, 10, {v(t)}')
    a(f'v_bfe_u32 {v(t+2)}, {v(VL)}, 2, 2')
    a(f'v_lshl_add_u32 {v(t)}, {v(t+2)}, 7, {v(t)}')
    a(f'v_add_u32 {v(RA)}, s4, {v(t)}')
    for i in range(1, 4):
        a(f'v_xor_b32 {v(RA+i)}, {32*i}, {v(RA)}')
    a(f'v_and_b32 {v(t)}, 15, {v(VL)}')
    a(f'v_lshlrev_b32 {v(GA)}, 4, {v(t+1)}')
    a(f'v_lshl_add_u32 {v(OA)}, {v(t)}, 6, {v(GA)}')
    a(f'v_add_u32 {v(GA)}, {GW_LDS}, {v(GA)}')
    a(f'v_lshrrev_b32 {v(t+2)}, 1, {v(t)}')
    a(f'v_xor_b32 {v(t+2)}, {v(t+1)}, {v(t+2)}')
    a(f'v_lshlrev_b32 {v(t+2)}, 4, {v(t+2)}')
    a(f'v_lshl_add_u32 {v(t)}, {v(t)}, 7, {v(t+2)}')
    a(f'v_add_u32 {v(XA)}, s4, {v(t)}')
    a(f'v_xor_b32 {v(XA+1)}, 64, {v(XA)}')
    D = Z + 12
    XB, GW, AC = 80, 96, 104
    for i in range(0, 8, 2):
        a(f'v_mov_b64 {v(AC+i,2)}, 0')
    a(f's_mul_i32 {s(S_IT)}, {s(S_WV)}, 40960')
    a(f's_add_u32 {s(S_IT)}, {s(S_IT)}, {hex(WS_UT)}')
    for c in range(10):
        so = (c & 3) * 4096
        last = max(i for i, tg in enumerate(q) if tg == ('x', c))
        a(f's_waitcnt vmcnt({len(q)-1-last})')
        for cg in range(4):
            for h in range(2):
                a(f'ds_read_b64_tr_b16 {v(D+4*cg+2*h,2)}, {v(RA+(cg^h))} offset:{so+h*512}')
        for k in range(2):
            a(f'ds_read_b128 {v(GW+4*k,4)}, {v(GA)} offset:{128*c+64*k}')
            for rg in range(2):
                a(f'ds_read_b128 {v(XB+8*k+4*rg,4)}, {v(XA+k)} offset:{so+rg*2048}')
        for cg in range(4):
            a(f's_waitcnt lgkmcnt({12-2*cg})')
            a(f'buffer_store_dwordx4 {v(D+4*cg,4)}, {v(OA)}, {s(SWS,4)}, {s(S_IT)} offen offset:{cg*1024} sc1'); q.append('s')
        a(f's_add_u32 {s(S_IT)}, {s(S_IT)}, 4096')
        for k in range(2):
            a(f's_waitcnt lgkmcnt({3-3*k})')
            for rg in range(2):
                a(f'v_mfma_f32_16x16x32_bf16 {v(AC+4*rg,4)}, {v(GW+4*k,4)}, {v(XB+8*k+4*rg,4)}, {v(AC+4*rg,4)}')
        if c + 4 < 10:
            xchunk(c & 3); q += [('x', c + 4)] * 4
        elif c < 9:
            a(f's_add_u32 m0, {s(S_BASE)}, {(c-6)*8192}')
            wchunk(); q += [('w', c - 6)] * 8
    stamp(a, 4, 3)
    a(f'v_cmp_gt_u32 vcc, 16, {v(VL)}')
    a(f'v_cndmask_b32 {v(AC)}, {v(AC+4)}, {v(AC)}, vcc')
    a(f'v_mul_f32 {v(AC)}, 0xbfb8aa3b, {v(AC)}')
    a(f'v_exp_f32 {v(AC)}, {v(AC)}')
    a(f'v_lshlrev_b32 {v(t+3)}, 2, {v(VL)}')
    a(f'v_add_f32 {v(AC)}, 1.0, {v(AC)}')
    a(f's_lshl_b32 s3, {s(S_WV)}, 7')
    a(f'v_rcp_f32 {v(AC)}, {v(AC)}')
    a(f's_add_u32 s3, s3, {hex(WS_G)}')
    a('s_mov_b32 exec_hi, 0')
    a(f'buffer_store_dword {v(AC)}, {v(t+3)}, {s(SWS,4)}, s3 offen sc1')
    a('s_mov_b32 exec_hi, -1')
    a('s_waitcnt vmcnt(5)')
    a.label('sd_pack')
    stamp(a, 5, 3)
    A = 16
    t = 12
    a(f'v_lshrrev_b32 {v(t)}, 2, {v(VL)}')
    a(f'v_and_b32 {v(t+1)}, 7, {v(t)}')
    a(f'v_lshlrev_b32 {v(t)}, 8, {v(t)}')
    a(f'v_lshl_add_u32 {v(t)}, {v(t+1)}, 5, {v(t)}')
    a(f'v_and_b32 {v(t+1)}, 3, {v(VL)}')
    a(f'v_lshl_add_u32 {v(t)}, {v(t+1)}, 3, {v(t)}')
    a(f'v_add_u32 {v(A)}, {s(S_BASE)}, {v(t)}')
    for j in range(1, 8):
        a(f'v_xor_b32 {v(A+j)}, {32*j}, {v(A)}')
    D = 24
    a.label('sd_wp')
    for j in range(8):
        for h in range(2):
            a(f'ds_read_b64_tr_b16 {v(D+4*j+2*h,2)}, {v(A+j)} offset:{h*4096}')
        a(f'v_add_u32 {v(A+j)}, 8192, {v(A+j)}')
        if j == 5:
            a('s_waitcnt lgkmcnt(8)')
    for j in range(8):
        a(f's_waitcnt lgkmcnt({min(8, 14-2*j)})')
        a(f'buffer_store_dwordx4 {v(D+4*j,4)}, {v(PO+j)}, {s(SWS,4)}, {s(S_PO)} offen sc1')
    a(f's_add_u32 {s(S_PO)}, {s(S_PO)}, 5120')
    a(f's_sub_u32 {s(S_N)}, {s(S_N)}, 1')
    a(f's_cmp_lg_u32 {s(S_N)}, 0')
    a('s_cbranch_scc1 sd_wp')
    stamp(a, 7, 3)
    a(f's_lshl_b32 s3, {s(S_WAVE)}, 2')
    a(f's_add_u32 s3, s3, {M_STG}')
    lds_flag_set(a, t + 1, 's3')
    dbg_arrive(a, t, D_CNT, 80, D_GO)
    stamp(a, 3)
```

```python
from common import *

LOG2E = 0x3fb8aa3b
INV2PI = 0x3e22f983
STG_ROW = 272
U_COPY = 4160
U_SIZE = 8320
KT_SIZE = 4576

ROW_OF = {256: [8], 258: [9], 260: [10, 12], 262: [13], 264: [14], 512: [16], 516: [17], 520: [18],
          768: [20], 772: [21], 776: [22], 1024: [24], 1032: [25], 1536: [26], 1544: [27],
          1280: [28], 1288: [29], 1792: [30], 1800: [31]}
for i in range(8):
    ROW_OF[i] = [i]


class KgenRegs:
    def __init__(self, base):
        b = base
        self.par = b; b += 6
        self.ldt = b; b += 1
        self.dsk = b; b += 1
        self.wa = b; b += 1
        self.ra = b; b += 1
        self.t = b; b += 8
        self.z = b; b += 3
        self.y1 = b; b += 3
        self.zz = b; b += 3
        self.c = b; b += 12
        self.pk = b; b += 2
        b = (b + 3) // 4 * 4
        self.bf = b; b += 32
        self.af = b; b += 16
        self.acc = b; b += 16
        self.end = b


def cmul(a, d, x, m):
    a(f'v_mul_f32 {v(d)}, {v(x)}, {v(m)}')
    a(f'v_mul_f32 {v(d+1)}, {v(x)}, {v(m+1)}')
    a(f'v_fmac_f32 {v(d)}, {v(x+1)}, {v(m+2)}')
    a(f'v_fmac_f32 {v(d+1)}, {v(x+1)}, {v(m)}')


def kgen_loads(a, R, sp, s_ldt, s_dsk, s_ch, vlane):
    t = R.t
    a(f's_lshl_b32 s3, {s(s_ch)}, 8')
    a(f'v_lshlrev_b32 {v(t)}, 2, {v(vlane)}')
    a(f'v_add_u32 {v(t)}, s3, {v(t)}')
    a(f's_lshl_b32 s3, {s(s_ch)}, 1')
    a(f'v_mov_b32 {v(t+1)}, s3')
    a(f'global_load_ushort {v(R.ldt)}, {v(t+1)}, {s(s_ldt,2)}')
    for i in range(6):
        a(f'global_load_dword {v(R.par+i)}, {v(t)}, {s(sp+2*i,2)}')
    a(f'global_load_ushort {v(R.dsk)}, {v(t+1)}, {s(s_dsk,2)}')


def kgen_addr(a, R, s_stg, vlane):
    t = R.t + 2
    a(f'v_lshlrev_b32 {v(R.wa)}, 2, {v(vlane)}')
    a(f'v_add_u32 {v(R.wa)}, {s(s_stg)}, {v(R.wa)}')
    a(f'v_and_b32 {v(t)}, 31, {v(vlane)}')
    a(f'v_mul_u32_u24 {v(t)}, {STG_ROW}, {v(t)}')
    a(f'v_lshrrev_b32 {v(t+1)}, 5, {v(vlane)}')
    a(f'v_lshl_add_u32 {v(t)}, {v(t+1)}, 4, {v(t)}')
    a(f'v_add_u32 {v(R.ra)}, {s(s_stg)}, {v(t)}')


def kgen_body(a, R):
    t = R.t
    a(f'v_lshlrev_b32 {v(R.ldt)}, 16, {v(R.ldt)}')
    a(f'v_mul_f32 {v(R.ldt)}, {hex(LOG2E)}, {v(R.ldt)}')
    a(f'v_exp_f32 {v(R.ldt)}, {v(R.ldt)}')
    a(f'v_lshlrev_b32 {v(R.dsk)}, 16, {v(R.dsk)}')
    a(f'v_cvt_pk_bf16_f32 {v(R.ldt)}, {v(R.ldt)}, {v(R.ldt)}')
    a(f'v_and_b32 {v(R.ldt)}, 0xffff0000, {v(R.ldt)}')
    pkflip = [0]

    def put(x, rows, neg):
        p = R.pk + pkflip[0]; pkflip[0] ^= 1
        a(f'v_cvt_pk_bf16_f32 {v(p)}, {v(x)}, {"-" if neg else ""}{v(x+1)}')
        for r in rows:
            a(f'ds_write_b32 {v(R.wa)}, {v(p)} offset:{r*STG_ROW}')

    a(f's_mov_b32 {s(SL)}, 2')
    a.label('kg_loop')
    if True:
        def ext(d, src):
            a(f'v_lshlrev_b32 {v(d)}, 16, {v(src)}')
        ext(t, R.par); ext(t + 1, R.par + 1)
        a(f'v_mul_f32 {v(t)}, {v(R.ldt)}, {v(t)}')
        a(f'v_mul_f32 {v(t+1)}, {v(R.ldt)}, {v(t+1)}')
        a(f'v_mul_f32 {v(t)}, {hex(LOG2E)}, {v(t)}')
        a(f'v_mul_f32 {v(t+1)}, {hex(INV2PI)}, {v(t+1)}')
        a(f'v_mul_f32 {v(t+2)}, 0x41000000, {v(t)}')
        a(f'v_mul_f32 {v(t+3)}, 0x41000000, {v(t+1)}')
        a(f'v_fract_f32 {v(t+1)}, {v(t+1)}')
        a(f'v_fract_f32 {v(t+3)}, {v(t+3)}')
        a(f'v_exp_f32 {v(t+2)}, {v(t+2)}')
        a(f'v_cos_f32 {v(R.y1)}, {v(t+3)}')
        a(f'v_sin_f32 {v(R.y1+1)}, {v(t+3)}')
        a(f'v_exp_f32 {v(t)}, {v(t)}')
        a(f'v_cos_f32 {v(R.z)}, {v(t+1)}')
        a(f'v_sin_f32 {v(R.z+1)}, {v(t+1)}')
        a(f'v_mul_f32 {v(R.y1)}, {v(t+2)}, {v(R.y1)}')
        a(f'v_mul_f32 {v(R.y1+1)}, {v(t+2)}, {v(R.y1+1)}')
        a(f'v_mov_b32 {v(t+4)}, 0x3f80')
        a(f'v_mul_f32 {v(R.z)}, {v(t)}, {v(R.z)}')
        a(f'v_mul_f32 {v(R.z+1)}, {v(t)}, {v(R.z+1)}')
        a(f'v_sub_f32 {v(R.y1+2)}, 0, {v(R.y1+1)}')
        a(f'v_sub_f32 {v(R.z+2)}, 0, {v(R.z+1)}')
        a(f'ds_write_b32 {v(R.wa)}, {v(t+4)}')
        put(R.y1, [1], False)
        cur = R.y1
        for j in range(2, 33):
            d = R.zz if j == 32 else R.c + 2 * (j & 1)
            cmul(a, d, cur, R.y1)
            if j < 32:
                put(d, [j], False)
            cur = d
        a(f'v_sub_f32 {v(R.zz+2)}, 0, {v(R.zz+1)}')
        for m in range(8):
            a(f'ds_read_b128 {v(R.bf+4*m,4)}, {v(R.ra)} offset:{32*m}')
        ext(t, R.par + 2); ext(t + 1, R.par + 3); ext(t + 2, R.par + 4); ext(t + 3, R.par + 5)
        a(f'v_mul_f32 {v(t)}, {v(R.ldt)}, {v(t)}')
        a(f'v_mul_f32 {v(t+1)}, {v(R.ldt)}, {v(t+1)}')
        a(f'v_sub_f32 {v(t+4)}, 0, {v(t+3)}')
        for i in range(6):
            a(f'v_lshrrev_b32 {v(R.par+i)}, 16, {v(R.par+i)}')
        c = R.c
        X0, X2, X4, X6, XA, XB = c, c + 2, c + 4, c + 6, c + 8, c + 10
        cmul(a, X0, t, t + 2); put(X0, [0], True)
        cmul(a, XA, X0, R.z); put(XA, [1], True)
        cmul(a, X2, XA, R.z); put(X2, [2], True)
        cmul(a, XA, X2, R.z); put(XA, [3], True)
        cmul(a, X4, XA, R.z); put(X4, [4], True)
        cmul(a, XA, X4, R.z); put(XA, [5], True)
        cmul(a, X6, XA, R.z); put(X6, [6], True)
        cmul(a, XA, X6, R.z); put(XA, [7], True)
        cmul(a, XA, X2, R.zz); put(XA, ROW_OF[258], True)
        cmul(a, XA, X6, R.zz); put(XA, ROW_OF[262], True)
        cmul(a, X2, X0, R.zz); put(X2, ROW_OF[256], True)
        cmul(a, X6, X4, R.zz); put(X6, ROW_OF[260], True)
        cmul(a, XA, X2, R.y1); put(XA, ROW_OF[264], True)
        cmul(a, X4, X6, R.zz); put(X4, ROW_OF[516], True)
        cmul(a, X6, X4, R.zz); put(X6, ROW_OF[772], True)
        p0, q0, p1, q1 = X2, XA, X0, XB
        for al in (512, 768, 1024, 1280, 1536, 1792):
            cmul(a, p1, p0, R.zz); put(p1, ROW_OF[al], True)
            cmul(a, q1, q0, R.zz); put(q1, ROW_OF[al + 8], True)
            p0, p1 = p1, p0
            q0, q1 = q1, q0
        for m0 in (0, 4):
            for m in range(4):
                a(f'ds_read_b128 {v(R.af+4*m,4)}, {v(R.ra)} offset:{32*(m0+m)}')
            for m in range(4):
                a(f's_waitcnt lgkmcnt({3-m})')
                cc = v(R.acc, 16)
                a(f'v_mfma_f32_32x32x16_bf16 {v(R.acc,16)}, {v(R.af+4*m,4)}, {v(R.bf+4*(m0+m),4)}, {cc}')
    a(f's_sub_u32 {s(SL)}, {s(SL)}, 1')
    a(f's_cmp_lg_u32 {s(SL)}, 0')
    a('s_cbranch_scc1 kg_loop')


def kexpand(a, R, s_kt, vlane):
    t = R.t; A = R.acc
    w = R.bf
    ad = R.c
    a(f'v_and_b32 {v(t)}, 31, {v(vlane)}')
    a(f'v_lshrrev_b32 {v(t+1)}, 5, {v(vlane)}')
    a(f'v_lshlrev_b32 {v(t+2)}, 4, {v(t)}')
    a(f'v_lshl_add_u32 {v(t+3)}, {v(t+1)}, 3, {v(t+2)}')
    a(f'v_sub_u32 {v(ad)}, {s(s_kt)}, {v(t+3)}')
    a(f'v_lshl_add_u32 {v(t+3)}, {v(t+1)}, 9, {v(t+2)}')
    a(f'v_sub_u32 {v(ad+1)}, {s(s_kt)}, {v(t+3)}')
    a(f'v_lshlrev_b32 {v(ad+2)}, 4, {v(vlane)}')
    a(f'v_add_u32 {v(ad+2)}, {s(s_kt)}, {v(ad+2)}')
    a(f'v_add_u32 {v(ad)}, {2*2044-512}, {v(ad)}')
    a(f'v_add_u32 {v(ad+1)}, {2*(2040-1536)}, {v(ad+1)}')
    a(f'v_cmp_eq_u32 vcc, 0, {v(vlane)}')
    a(f'v_cndmask_b32 {v(t+4)}, 0, {v(R.dsk)}, vcc')
    a(f'v_and_b32 {v(t+5)}, 1, {v(vlane)}')
    a(f'v_cmp_eq_u32 vcc, 0, {v(t+5)}')
    a(f'v_add_f32 {v(A)}, {v(A)}, {v(t+4)}')
    a(f'v_cvt_pk_bf16_f32 {v(w)}, {v(A+3)}, {v(A+2)}')
    a(f'v_cvt_pk_bf16_f32 {v(w+1)}, {v(A+1)}, {v(A)}')
    a(f'ds_write_b64 {v(ad)}, {v(w,2)} offset:512')
    a(f'v_cvt_pk_bf16_f32 {v(w+2)}, {v(A+6)}, {v(A+5)}')
    a(f'v_cvt_pk_bf16_f32 {v(w+3)}, {v(A+4)}, {v(A+4)}')
    a(f'ds_write_b64 {v(ad)}, {v(w+2,2)}')
    a(f'v_cvt_pk_bf16_f32 {v(w+4)}, {v(A+10)}, {v(A+10)}')
    a(f'v_cvt_pk_bf16_f32 {v(w+5)}, {v(A+9)}, {v(A+9)}')
    a(f'v_cvt_pk_bf16_f32 {v(w+6)}, {v(A+9)}, {v(A+8)}')
    a(f'v_cvt_pk_bf16_f32 {v(w+7)}, {v(A+8)}, {v(A+8)}')
    a(f'ds_write_b128 {v(ad+1)}, {v(w+4,4)} offset:{2*(1536-512)}')
    for i, al in ((0, 1024), (1, 1536)):
        k0, k8 = A + 12 + 2 * i, A + 13 + 2 * i
        o = w + 8 + 4 * i
        a(f'v_cndmask_b32 {v(t+6)}, {v(k8)}, {v(k0)}, vcc')
        a(f'v_cvt_pk_bf16_f32 {v(o)}, {v(k8)}, {v(k8)}')
        a(f'v_cvt_pk_bf16_f32 {v(o+1)}, {v(k8)}, {v(t+6)}')
        a(f'v_cvt_pk_bf16_f32 {v(o+2)}, {v(k0)}, {v(k0)}')
        a(f'v_mov_b32 {v(o+3)}, {v(o+2)}')
        a(f'ds_write_b128 {v(ad+1)}, {v(o,4)} offset:{2*(1536-al)}')
    z = w + 16
    for i in range(4):
        a(f'v_mov_b32 {v(z+i)}, 0')
    a(f'v_cmp_gt_u32 vcc, 30, {v(vlane)}')
    a('s_and_saveexec_b64 s[4:5], vcc')
    a(f'ds_write_b128 {v(ad+2)}, {v(z,4)} offset:4096')
    a('s_mov_b64 exec, s[4:5]')
    return z


class ConvRegs:
    def __init__(self, base):
        b = base
        self.ta = b; b += 4
        self.ga = b; b += 1
        self.oa = b; b += 1
        self.t = b; b += 2
        b = (b + 3) // 4 * 4
        self.acc = b; b += 32
        self.T = [b, b + 32]; b += 64
        self.G = [b, b + 32]; b += 64
        self.end = b


def conv_addr(a, C, s_u, s_kt, s_ch, vlane):
    t = C.t
    a(f'v_and_b32 {v(t)}, 15, {v(vlane)}')
    a(f'v_lshrrev_b32 {v(t+1)}, 4, {v(vlane)}')
    a(f'v_lshlrev_b32 {v(C.ga)}, 4, {v(t+1)}')
    a(f'v_lshlrev_b32 {v(C.oa)}, 5, {v(t)}')
    a(f'v_sub_u32 {v(C.ga)}, {v(C.ga)}, {v(C.oa)}')
    a(f'v_add_u32 {v(C.ga)}, 480, {v(C.ga)}')
    a(f'v_add_u32 {v(C.ga)}, {s(s_kt)}, {v(C.ga)}')
    a(f'v_and_b32 {v(C.ta)}, 1, {v(t+1)}')
    a(f'v_lshl_add_u32 {v(C.oa)}, {v(C.ta)}, 9, {v(C.oa)}')
    a(f'v_and_b32 {v(C.ta)}, 2, {v(t+1)}')
    a(f'v_lshl_add_u32 {v(C.oa)}, {v(C.ta)}, 3, {v(C.oa)}')
    a(f's_lshl_b32 s3, {s(s_ch)}, 12')
    a(f'v_add_u32 {v(C.oa)}, s3, {v(C.oa)}')
    a(f'v_lshrrev_b32 {v(C.ta)}, 1, {v(t)}')
    a(f'v_lshl_add_u32 {v(C.ta)}, {v(t+1)}, 2, {v(C.ta)}')
    a(f'v_lshlrev_b32 {v(C.ta)}, 2, {v(C.ta)}')
    a(f'v_and_b32 {v(t)}, 1, {v(t)}')
    a(f'v_mul_u32_u24 {v(t)}, {U_COPY}, {v(t)}')
    a(f'v_sub_u32 {v(C.ta)}, {v(C.ta)}, {v(t)}')
    a(f'v_add_u32 {v(C.ta)}, {U_COPY+4}, {v(C.ta)}')
    a(f'v_add_u32 {v(C.ta)}, {s(s_u)}, {v(C.ta)}')
    for i in range(1, 4):
        a(f'v_add_u32 {v(C.ta+i)}, {1024*i}, {v(C.ta)}')


def conv_loads(C, m0, buf):
    L = []
    T, G = C.T[buf], C.G[buf]
    for i in range(8):
        L.append(f'ds_read_b128 {v(G+4*i,4)}, {v(C.ga)} offset:{2*(1760+32*m0-256*i)}')
        o = 16 * (m0 - 1) + 128 * (i & 1)
        L.append(f'ds_read2_b32 {v(T+4*i,2)}, {v(C.ta+(i>>1))} offset0:{o} offset1:{o+1}')
        L.append(f'ds_read2_b32 {v(T+4*i+2,2)}, {v(C.ta+(i>>1))} offset0:{o+2} offset1:{o+3}')
    return L


def conv_body(a, C):
    a(f'v_add_u32 {v(C.ga)}, {s(S_MOFF)}, {v(C.ga)}')
    for i in range(4):
        a(f'v_add_u32 {v(C.ta+i)}, {s(S_MOFF)}, {v(C.ta+i)}')
    a.extend(conv_loads(C, 1, 0))
    for i in range(0, 32, 2):
        a(f'v_mov_b64 {v(C.acc+i,2)}, 0')
    a.label('cv_loop')
    for buf in range(2):
        T, G = C.T[buf], C.G[buf]
        M = []
        for c in range(8):
            for mu in range(c + 1):
                M.append(f'v_mfma_f32_16x16x32_bf16 {v(C.acc+4*c,4)}, {v(T+4*mu,4)}, {v(G+4*(c-mu),4)}, {v(C.acc+4*c,4)}')
        F = conv_loads(C, 2 + buf, buf ^ 1)
        a('s_waitcnt lgkmcnt(0)')
        L = interleave(M, F, 0, 28)
        if buf:
            X = [f'v_add_u32 {v(r)}, 128, {v(r)}' for r in (C.ga, C.ta, C.ta + 1, C.ta + 2, C.ta + 3)]
            X += [f's_sub_u32 {s(S_NIT)}, {s(S_NIT)}, 1', f's_cmp_lg_u32 {s(S_NIT)}, 0']
            L = L[:-8] + interleave(L[-8:], X, 0, 7)
        a.extend(L)
    a('s_cbranch_scc1 cv_loop')
    a('s_waitcnt lgkmcnt(0)')


def conv_store(a, C):
    p = C.T[0]
    a(f's_mov_b32 s3, {hex(WS_AT)}')
    for c in range(8):
        A = C.acc + 4 * c
        a(f'v_cvt_pk_bf16_f32 {v(p+2*c)}, {v(A)}, {v(A+1)}')
        a(f'v_cvt_pk_bf16_f32 {v(p+2*c+1)}, {v(A+2)}, {v(A+3)}')
    for c in range(0, 8, 2):
        a(f'v_permlane16_swap_b32 {v(p+2*c)}, {v(p+2*c+2)}')
        a(f'v_permlane16_swap_b32 {v(p+2*c+1)}, {v(p+2*c+3)}')
    for c in range(0, 8, 2):
        a(f'buffer_store_dwordx4 {v(p+2*c,4)}, {v(C.oa)}, {s(SWS,4)}, s3 offen offset:{512*c} sc1')


def ut_poll(a, vt):
    a(f'v_mov_b32 {v(vt)}, {F_MISC+M_TK}')
    a(f'v_mov_b32 {v(vt+1)}, 1')
    a('s_mov_b64 exec, 1')
    a(f'ds_add_rtn_u32 {v(vt+2)}, {v(vt)}, {v(vt+1)}')
    a('s_mov_b64 exec, -1')
    a('s_waitcnt lgkmcnt(0)')
    a(f'v_readfirstlane_b32 s4, {v(vt+2)}')
    a('s_cmp_lg_u32 s4, 0')
    a('s_cbranch_scc1 ut_lds')
    dbg_poll(a, vt, D_GO, 4)
    lds_flag_set(a, vt, M_Z)
    a.label('ut_lds')
    lds_flag_wait(a, vt, M_Z, 2)


def utab(a, vt, d):
    a(f'v_lshrrev_b32 {v(vt)}, 2, {v(VL)}')
    a(f'v_mul_u32_u24 {v(vt)}, 40960, {v(vt)}')
    a(f'v_and_b32 {v(vt+1)}, 3, {v(VL)}')
    a(f'v_lshl_add_u32 {v(vt)}, {v(vt+1)}, 4, {v(vt)}')
    a(f's_lshl_b32 s3, {s(S_CH)}, 6')
    a(f's_add_u32 s3, s3, {hex(WS_UT)}')
    for i in range(4):
        a(f'buffer_load_dwordx4 {v(d+4*i,4)}, {v(vt)}, {s(SWS,4)}, s3 offen sc1')
        if i < 3:
            a(f's_add_u32 s3, s3, {16*40960}')
    a(f'v_lshlrev_b32 {v(vt+1)}, 4, {v(VL)}')
    a(f'v_add_u32 {v(vt+1)}, {s(S_UB)}, {v(vt+1)}')
    e = d + 16
    a(f'v_mov_b32 {v(vt+2)}, 0')
    for i in range(4):
        u = d + 4 * i
        a(f's_waitcnt vmcnt({3-i})')
        a(f'ds_write_b128 {v(vt+1)}, {v(u,4)} offset:{32+1024*i}')
        if i:
            a(f'v_mov_b32_dpp {v(vt+2)}, {v(u-1)} wave_ror:1 row_mask:0xf bank_mask:0xf')
        a(f'v_mov_b32_dpp {v(vt+2)}, {v(u+3)} wave_shr:1 row_mask:0xf bank_mask:0xf')
        o = e + 4 * i
        for k in (3, 2, 1):
            a(f'v_alignbit_b32 {v(o+k)}, {v(u+k)}, {v(u+k-1)}, 16')
        a(f'v_alignbit_b32 {v(o)}, {v(u)}, {v(vt+2)}, 16')
        a(f'ds_write_b128 {v(vt+1)}, {v(o,4)} offset:{U_COPY+32+1024*i}')
```

```python
import sys
from build import *
import common
from g1 import *
from ssm import *
from side import side_prep
from g2 import *


OPT = {}


def go(a):
    a('s_waitcnt lgkmcnt(0)')
    a('s_barrier')
    stamp(a, 0)


def chan_setup(a):
    a(f's_cmp_lg_u32 {s(S_SIDE)}, 0')
    a('s_cbranch_scc1 ch_side')
    a(f's_lshr_b32 s3, {s(S_WAVE)}, 1')
    a(f's_sub_u32 s4, {s(S_WAVE)}, 4')
    a('s_cselect_b32 s3, s3, s4')
    a(f's_add_u32 {s(S_KW)}, s3, 4')
    a(f's_lshl_b32 s4, {s(S_IDX)}, 1')
    a('s_add_u32 s4, s4, 30')
    a(f's_add_u32 {s(S_CH)}, s4, s3')
    a(f's_mul_i32 s4, s3, {RA_STRIDE}')
    a(f's_add_u32 {s(S_UB)}, s4, {G_UB}')
    a(f's_mul_i32 s4, s3, {KT_SIZE}')
    a(f's_add_u32 {s(S_KT)}, s4, {G_KT}')
    a('s_lshl_b32 s4, s3, 13')
    a(f's_add_u32 {s(S_MB)}, s4, {G_MB}')
    a(f's_and_b32 s3, {s(S_WAVE)}, 1')
    a(f's_add_u32 {s(S_MODE)}, s3, 1')
    a('s_branch ch_join')
    a.label('ch_side')
    a(f's_sub_u32 s3, {s(S_WAVE)}, 2')
    a(f's_cmp_ge_u32 {s(S_WAVE)}, 6')
    a(f's_cselect_b32 {s(S_KW)}, s3, {s(S_WAVE)}')
    a(f's_sub_u32 s3, {s(S_IDX)}, 27')
    a('s_mul_i32 s3, s3, 6')
    a(f's_add_u32 {s(S_CH)}, s3, {s(S_KW)}')
    a(f's_mul_i32 s4, {s(S_KW)}, {RA_STRIDE}')
    a(f's_add_u32 {s(S_UB)}, s4, {S_UB0}')
    a(f's_mul_i32 s4, {s(S_KW)}, {KT_SIZE}')
    a(f's_add_u32 {s(S_KT)}, s4, {S_KT0}')
    a(f's_and_b32 s3, {s(S_WAVE)}, 1')
    a(f's_mul_i32 s3, s3, {PART}')
    a(f's_add_u32 {s(S_MB)}, s3, 10240')
    a(f's_lshr_b32 s3, {s(S_WAVE)}, 1')
    a('s_max_u32 s3, s3, 1')
    a(f's_sub_u32 {s(S_MODE)}, s3, 1')
    a.label('ch_join')
    a(f's_mul_i32 s3, {s(S_X)}, 80')
    a(f's_add_u32 {s(S_CH)}, {s(S_CH)}, s3')
    a(f's_cmp_eq_u32 {s(S_MODE)}, 2')
    a(f's_cselect_b32 {s(S_MOFF)}, 256, 0')
    a(f's_cmp_eq_u32 {s(S_MODE)}, 0')
    a(f's_cselect_b32 {s(S_NIT)}, 4, 2')
    a(f's_lshl_b32 {s(S_KW)}, {s(S_KW)}, 2')


def flag_off(a, base):
    a(f's_add_u32 s3, {s(S_KW)}, {base}')
    return 's3'


def fused(kmode=1):
    a = Asm()
    cold = Asm()
    a('s_cmp_ge_u32 s2, 256')
    a('s_cbranch_scc1 the_end')
    a('s_load_dwordx16 s[16:31], s[0:1], 0')
    a('s_load_dwordx16 s[32:47], s[0:1], 64')
    a('s_load_dwordx2 s[48:49], s[0:1], 128')
    a('v_lshrrev_b32 v2, 6, v0')
    a(f'v_and_b32 {v(VL)}, 63, v0')
    a(f'v_readfirstlane_b32 {s(S_WAVE)}, v2')
    a('v_lshlrev_b32 v0, 2, v0')
    a(f'v_add_u32 v0, {FB}, v0')
    a('v_mov_b32 v2, 0')
    a('ds_write_b32 v0, v2')
    stamp_init(a)
    a(f's_and_b32 {s(S_X)}, s2, 7')
    a(f's_lshr_b32 {s(S_IDX)}, s2, 3')
    a(f's_lshr_b32 {s(S_CG)}, {s(S_IDX)}, 2')
    a(f's_and_b32 s3, {s(S_IDX)}, 3')
    a(f's_lshl2_add_u32 {s(S_R2)}, {s(S_X)}, s3')
    a(f's_mov_b32 {s(S_TMO)}, 0x10000')
    a(f's_lshr_b32 s3, {s(S_X)}, 1')
    a('s_mul_i32 s3, s3, 27')
    a(f's_add_u32 s3, s3, {s(S_IDX)}')
    a(f's_lshr_b32 {s(S_CT)}, s3, 2')
    a('s_and_b32 s3, s3, 3')
    a(f's_and_b32 s4, {s(S_X)}, 1')
    a(f's_lshl2_add_u32 {s(S_RB)}, s4, s3')
    a(f's_mov_b32 {s(S_AT)}, {G_AT}')
    a(f's_cmp_ge_u32 {s(S_IDX)}, 27')
    a(f's_cselect_b32 {s(S_SIDE)}, 1, 0')
    a(f's_cselect_b32 {s(S_AT)}, {S_AT0}, {s(S_AT)}')
    a('s_cbranch_scc1 not_ld')
    a(f's_cmp_lt_u32 {s(S_WAVE)}, 6')
    a('s_cbranch_scc1 not_ld')
    g1_loader(a, kmode, go)
    stamp(a, 2)
    a('s_branch g2pre')

    a.label('not_ld')
    chan_setup(a)
    a(f's_cmp_lt_u32 {s(S_WAVE)}, 6')
    a('s_cbranch_scc1 not_prep')
    side_prep(a, go)
    a('s_branch late_conv')

    a.label('not_prep')
    a(f's_lshl_b32 s3, {s(S_SIDE)}, 2')
    a(f's_add_u32 s3, s3, {s(S_WAVE)}')
    a('s_cmp_ge_u32 s3, 4')
    a('s_cbranch_scc1 kgen')
    R = G1Regs(4)
    g1_addr(a, R)
    go(a)
    srd(a, SWS, P_WS, WS_SIZE)
    if OPT.get('gprio'):
        a(f's_setprio {OPT["gprio"]}')
    g1_main(a, R, cold)
    g1_epilogue(a, R)
    stamp(a, 3)
    a(f's_cmp_ge_u32 {s(S_IDX)}, 25')
    a('s_cbranch_scc1 atload')
    a.label('late_conv')
    C = ConvRegs(4)
    conv_addr(a, C, S_UB, S_KT, S_CH, VL)
    lds_flag_wait(a, C.t, flag_off(a, M_RDY), 1)
    a.label('conv')
    conv_body(a, C)
    stamp(a, 4, 2)
    a(f'v_lshlrev_b32 {v(C.ga)}, 4, {v(VL)}')
    a(f'v_add_u32 {v(C.ga)}, {s(S_MB)}, {v(C.ga)}')
    a(f's_cmp_eq_u32 {s(S_MODE)}, 0')
    a('s_cbranch_scc1 cv_store')
    a(f's_cmp_eq_u32 {s(S_MODE)}, 1')
    a('s_cbranch_scc1 cv_a')
    a(f's_cmp_eq_u32 {s(S_SIDE)}, 0')
    a('s_cbranch_scc1 cv_mb')
    lds_flag_wait(a, C.t, M_STG + 24, 1, 2)
    a.label('cv_mb')
    for c in range(8):
        a(f'ds_write_b128 {v(C.ga)}, {v(C.acc+4*c,4)} offset:{c*1024}')
    lds_flag_set(a, C.t, flag_off(a, M_MBF))
    a('s_branch cv_next')
    a.label('cv_a')
    lds_flag_wait(a, C.t, flag_off(a, M_MBF))
    for c in range(8):
        a(f'ds_read_b128 {v(C.G[0]+4*c,4)}, {v(C.ga)} offset:{c*1024}')
    lds_flag_set(a, C.t, flag_off(a, M_CDONE))
    for c in range(8):
        a(f's_waitcnt lgkmcnt({8-c})')
        for i in (0, 2):
            a(f'v_pk_add_f32 {v(C.acc+4*c+i,2)}, {v(C.acc+4*c+i,2)}, {v(C.G[0]+4*c+i,2)}')
    a.label('cv_store')
    conv_store(a, C)
    a(f's_lshl_b32 s3, {s(S_X)}, 7')
    a(f's_add_u32 s3, s3, {hex(FL_CA)}')
    a(f'v_mov_b32 {v(C.t)}, 0')
    a(f'v_mov_b32 {v(C.t+1)}, 1')
    a('s_waitcnt vmcnt(0)')
    a('s_mov_b64 exec, 1')
    a(f'buffer_atomic_add {v(C.t+1)}, {v(C.t)}, {s(SWS,4)}, s3 offen sc0 sc1')
    a('s_mov_b64 exec, -1')
    a(f's_lshl_b32 s3, {s(S_X)}, 12')
    a(f's_add_u32 s3, s3, {hex(FL_GA)}')
    a(f'v_lshlrev_b32 {v(C.ga)}, 7, {v(VL)}')
    a(f'v_mov_b32 {v(C.oa)}, 1')
    a('s_waitcnt vmcnt(0)')
    a(f'v_readfirstlane_b32 s4, {v(C.t+1)}')
    a('s_cmp_lg_u32 s4, 79')
    a('s_cbranch_scc1 cv_next')
    a('s_mov_b32 exec_hi, 0')
    a(f'buffer_store_dword {v(C.oa)}, {v(C.ga)}, {s(SWS,4)}, s3 offen sc1')
    a('s_mov_b32 exec_hi, -1')
    a.label('cv_next')
    a(f's_cmp_ge_u32 {s(S_WAVE)}, 4')
    a('s_cbranch_scc1 g2pre')
    a.label('atload')
    atload(a)
    a('s_branch final')

    a.label('kgen')
    K = KgenRegs(4)
    kgen_addr(a, K, S_UB, VL)
    for i in range(0, 16, 2):
        a(f'v_mov_b64 {v(K.acc+i,2)}, 0')
    go(a)
    srd(a, SWS, P_WS, WS_SIZE)
    a(f's_sub_u32 s3, {s(S_IDX)}, 25')
    a('s_cmp_lt_u32 s3, 2')
    a('s_cbranch_scc1 kg_skip')
    kgen_loads(a, K, P_PAR, P_LDT, P_DSK, S_CH, VL)
    a('s_waitcnt vmcnt(0)')
    stamp(a, 1)
    if OPT.get('kprio'):
        a(f's_setprio {OPT["kprio"]}')
    kgen_body(a, K)
    z = kexpand(a, K, S_KT, VL)
    a(f'v_mov_b32 v2, {s(S_UB)}')
    for o in (0, 16, U_COPY, U_COPY + 16):
        a(f'ds_write_b128 v2, {v(z,4)} offset:{o}')
    a.label('kg_skip')
    stamp(a, 2)
    ut_poll(a, 2)
    stamp(a, 3)
    a(f's_sub_u32 s3, {s(S_IDX)}, 25')
    a('s_cmp_lt_u32 s3, 2')
    a('s_cbranch_scc1 g2pre')
    utab(a, 4, 8)
    lds_flag_set(a, 2, flag_off(a, M_RDY))
    a(f's_cmp_eq_u32 {s(S_SIDE)}, 0')
    a('s_cbranch_scc1 g2pre')
    conv_addr(a, C, S_UB, S_KT, S_CH, VL)
    a('s_branch conv')

    a.extend(cold)
    a.label('g2pre')
    g2_pre(a)
    g2_main(a)
    final(a)
    stamp(a, 8)
    stamp_dump(a, 2)
    a.label('the_end')
    a('s_endpgm')
    return a


if __name__ == '__main__':
    out = sys.argv[1]
    common.STAMPS[0] = 2 if 'st' in sys.argv[2:] else 3 if 'st1' in sys.argv[2:] else 0
    km = 1
    for o in sys.argv[2:]:
        if o.startswith('k='):
            km = int(o[2:])
        elif '=' in o:
            OPT[o.split('=')[0]] = int(o.split('=')[1])
    a = fused(km)
    write(out, [(NAME + '_kernel', 256, 512, LDS_SIZE)], [(NAME + '_kernel', a, 256)])
```

```python
from asmlib import *
WS_H = 0
WS_AT = 0x700000
WS_G = 0xA00000
WS_FL = 0xA10000
FL_H = WS_FL
FL_GA = WS_FL + 0x4000
FL_CA = WS_FL + 0xC000
D_CNT, D_GO = 0, 128
WS_STAMP = 0xB00000
WS_UT = 0xC00000
WS_WP = 0x1000000
WS_SIZE = 0x1400000
X_BYTES = 2048 * 1280
W_BYTES = 640 * 3456
NAME = 'gated_mix__ssm_conv_s4__glu_gated_bilinear__prompt'

S_WAVE, S_RB, S_CT, S_K0, S_X, S_IDX, S_TMO, S_R2, S_CG, S_SIDE = 6, 7, 8, 9, 10, 11, 12, 13, 14, 15
P_X, P_PAR, P_LDT, P_DSK, P_WG, P_WU, P_WD, P_GW, P_OUT, P_DBG, P_WS = 16, 18, 30, 32, 36, 38, 40, 42, 44, 46, 48
SX, SW, SWS, SO = 52, 56, 60, 64
S_CH, S_UB, S_KT, S_MOFF, S_NIT, S_MODE, S_MB, S_AT = 68, 69, 70, 71, 72, 73, 74, 75
SL = 76
VL = 1
V_RA, V_J1 = 252, 253
S_KW = 50

LDS_SIZE = 163840
FB = 161792
F_DONE = FB
F_READY = FB + 1024
F_MISC = FB + 1536
M_TK, M_TAIL = 12, 40
M_Z, M_WD, M_HCNT, M_RDY, M_MBF, M_CDONE, M_STG = 0, 4, 8, 16, 48, 64, 96
RA_STRIDE = 8736
G_UB, G_KT, G_MB, G_AT = 98304, 115776, 124928, 141312
S_UB0, S_KT0 = 81920, 134336
S_AT0 = S_UB0 + 4 * RA_STRIDE


def srd(a, d, p, nbytes):
    a(f's_mov_b32 {s(d)}, {s(p)}')
    a(f's_mov_b32 {s(d+1)}, {s(p+1)}')
    a(f's_mov_b32 {s(d+2)}, {hex(nbytes)}')
    a(f's_mov_b32 {s(d+3)}, 0x20000')


_uid = [0]


def uid(p):
    _uid[0] += 1
    return f'{p}_{_uid[0]}'


def spin(a, loads, wait, cmp, sleep=0):
    n = uid('spin')
    a.label(n)
    a.extend(loads)
    a(wait)
    a.extend(cmp)
    a(f's_cbranch_vccz {n}_ok')
    if sleep:
        a(f's_sleep {sleep}')
    a(f's_sub_u32 {s(S_TMO)}, {s(S_TMO)}, 1')
    a(f's_cbranch_scc0 {n}')
    a(f's_mov_b32 {s(S_TMO)}, 0')
    a.label(n + '_ok')


def lds_flag_wait(a, vt, off, sleep=0, nwords=1):
    if isinstance(off, int):
        if nwords == 1:
            a(f'v_mov_b32 {v(vt)}, {F_MISC+off}')
        else:
            a(f'v_and_b32 {v(vt)}, {nwords-1}, {v(VL)}')
            a(f'v_lshlrev_b32 {v(vt)}, 2, {v(vt)}')
            a(f'v_add_u32 {v(vt)}, {F_MISC+off}, {v(vt)}')
    else:
        a(f'v_mov_b32 {v(vt)}, {off}')
        a(f'v_add_u32 {v(vt)}, {F_MISC}, {v(vt)}')
    spin(a, [f'ds_read_b32 {v(vt+1)}, {v(vt)}'], 's_waitcnt lgkmcnt(0)', [f'v_cmp_eq_u32 vcc, 0, {v(vt+1)}'], sleep)


def lds_flag_set(a, vt, off):
    if isinstance(off, int):
        a(f'v_mov_b32 {v(vt)}, {F_MISC+off}')
    else:
        a(f'v_mov_b32 {v(vt)}, {off}')
        a(f'v_add_u32 {v(vt)}, {F_MISC}, {v(vt)}')
    a(f'v_mov_b32 {v(vt+1)}, 1')
    a(f'ds_write_b32 {v(vt)}, {v(vt+1)}')


def flag_store(a, vt, s_off):
    a(f'v_mov_b32 {v(vt)}, 0')
    a(f'v_mov_b32 {v(vt+1)}, 1')
    a('s_mov_b64 exec, 1')
    a(f'buffer_store_dword {v(vt+1)}, {v(vt)}, {s(SWS,4)}, {s_off} offen sc1')
    a('s_mov_b64 exec, -1')


def dbg_arrive(a, vt, cnt_off, n, go_off):
    lb = uid('arr')
    a(f'v_mov_b32 {v(vt)}, 0')
    a(f'v_mov_b32 {v(vt+1)}, 1')
    a('s_waitcnt vmcnt(0)')
    a('s_mov_b64 exec, 1')
    a(f'global_atomic_add {v(vt+2)}, {v(vt)}, {v(vt+1)}, {s(P_DBG,2)} offset:{cnt_off} sc0 sc1')
    a('s_waitcnt vmcnt(0)')
    a(f'v_readfirstlane_b32 s4, {v(vt+2)}')
    a(f's_cmp_lg_u32 s4, {n-1}')
    a(f's_cbranch_scc1 {lb}')
    a(f'global_store_dword {v(vt)}, {v(vt+1)}, {s(P_DBG,2)} offset:{go_off} sc1')
    a.label(lb)
    a('s_mov_b64 exec, -1')


def dbg_poll(a, vt, s_off, sleep):
    a(f'v_mov_b32 {v(vt)}, {s_off}')
    spin(a, [f'global_load_dword {v(vt+1)}, {v(vt)}, {s(P_DBG,2)} sc1'], 's_waitcnt vmcnt(0)', [f'v_cmp_ne_u32 vcc, 1, {v(vt+1)}'], sleep)


OPT = {}
STAMPS = [False]
CLK = ['s_memrealtime']
S_ST = 82


def stamp(a, slot, grp=1):
    if STAMPS[0] and (grp == 1 or grp == STAMPS[0]):
        a(f'{CLK[0]} {s(S_ST+2*slot,2)}')


def stamp_it(a, s_it, vals, slot0, grp=3):
    if STAMPS[0] == grp:
        a(f'{CLK[0]} s[4:5]')
        a('s_waitcnt lgkmcnt(0)')
        for i, x in enumerate(vals):
            a(f's_cmp_eq_u32 {s(s_it)}, {x}')
            a(f's_cselect_b32 {s(S_ST+2*(slot0+i))}, s4, {s(S_ST+2*(slot0+i))}')


def stamp_init(a):
    if STAMPS[0]:
        for i in range(9):
            a(f's_mov_b32 {s(S_ST+2*i)}, 0')


def stamp_dump(a, vt):
    if not STAMPS[0]:
        return
    a('s_waitcnt lgkmcnt(0)')
    a(f'v_mov_b32 {v(vt)}, 0')
    for i in range(9):
        a(f'v_writelane_b32 {v(vt)}, {s(S_ST+2*i)}, {i}')
    a('s_lshl_b32 s3, s2, 3')
    a(f's_add_u32 s3, s3, {s(S_WAVE)}')
    a('s_lshl_b32 s3, s3, 6')
    a(f's_add_u32 s3, s3, {hex(WS_STAMP)}')
    a(f'v_lshlrev_b32 {v(vt+1)}, 2, {v(VL)}')
    a('s_mov_b64 exec, 0xffff')
    a(f'buffer_store_dword {v(vt)}, {v(vt+1)}, {s(SWS,4)}, s3 offen')
    a('s_mov_b64 exec, -1')
```

```python
from common import *

XSLOT = 16384
WBASE = 65536


def k0_of(a, mode):
    if mode == 0:
        a(f's_mov_b32 {s(S_K0)}, 0')
        return
    a(f's_and_b32 s3, {s(S_RB)}, 3')
    a('s_lshl_b32 s3, s3, 2')
    a('s_lshr_b32 s3, 0x8530, s3')
    a('s_and_b32 s3, s3, 15')
    if mode == 2:
        a('s_mov_b32 s3, 0')
    if mode != 3:
        a(f's_add_u32 s3, s3, {s(S_CT)}')
    a('s_mul_i32 s4, s3, 205')
    a('s_lshr_b32 s4, s4, 11')
    a('s_mul_i32 s4, s4, 10')
    a(f's_sub_u32 {s(S_K0)}, s3, s4')


def g1_loader(a, kmode, go):
    vb = 4
    t = vb + 16
    J0, J1, RA, DA, D = t + 6, V_J1, V_RA, t + 7, t + 8
    S_XK, S_WK, S_M, S_XO, S_IT, S_L = SL, SL + 1, SL + 2, SL + 3, SL + 4, SL + 5
    k0_of(a, kmode)
    a(f's_and_b32 {s(S_L)}, {s(S_WAVE)}, 1')
    a(f'v_lshrrev_b32 {v(t)}, 3, {v(VL)}')
    a(f'v_lshrrev_b32 {v(t+1)}, 4, {v(VL)}')
    a(f'v_xor_b32 {v(t+1)}, {v(t+1)}, {v(VL)}')
    a(f'v_and_b32 {v(t+1)}, 7, {v(t+1)}')
    a(f's_lshl_b32 s3, {s(S_RB)}, 1')
    a(f's_add_u32 s3, s3, {s(S_L)}')
    a(f's_mul_i32 s3, s3, {128*1280}')
    a(f'v_mul_u32_u24 {v(t+2)}, 1280, {v(t)}')
    a(f'v_add_u32 {v(t+2)}, s3, {v(t+2)}')
    a(f'v_lshl_add_u32 {v(vb)}, {v(t+1)}, 4, {v(t+2)}')
    a(f'v_xor_b32 {v(t+3)}, 64, {v(vb)}')
    for i in range(1, 8):
        a(f'v_add_u32 {v(vb+i)}, {i*8*1280-(i&3)*1024}, {v(vb if i % 2 == 0 else t+3)}')
    a(f'v_lshrrev_b32 {v(t+1)}, 3, {v(VL)}')
    a(f'v_and_b32 {v(t+1)}, 2, {v(t+1)}')
    a(f'v_xor_b32 {v(t+1)}, {v(t+1)}, {v(VL)}')
    a(f'v_and_b32 {v(t+1)}, 7, {v(t+1)}')
    a(f'v_mul_u32_u24 {v(t+2)}, 3456, {v(t)}')
    a(f's_lshl_b32 s3, {s(S_CT)}, 7')
    a(f'v_add_u32 {v(t+2)}, s3, {v(t+2)}')
    a(f'v_lshl_add_u32 {v(vb+8)}, {v(t+1)}, 4, {v(t+2)}')
    a(f'v_xor_b32 {v(t+3)}, 64, {v(vb+8)}')
    for i in range(1, 8):
        a(f'v_add_u32 {v(vb+8+i)}, {i*8*3456-(i&3)*1024}, {v(vb+8 if i % 2 == 0 else t+3)}')
    a(f's_lshl_b32 {s(S_XK)}, {s(S_K0)}, 7')
    a(f's_mul_i32 {s(S_WK)}, {s(S_K0)}, {64*3456}')
    a(f's_lshl_b32 {s(S_M)}, {s(S_L)}, 13')
    go(a)
    a(f's_cmp_eq_u32 {s(S_L)}, 1')
    a(f's_cselect_b32 {s(P_WG)}, {s(P_WU)}, {s(P_WG)}')
    a(f's_cselect_b32 {s(P_WG+1)}, {s(P_WU+1)}, {s(P_WG+1)}')
    srd(a, SW, P_WG, W_BYTES)
    srd(a, SX, P_X, X_BYTES)

    def ix(hs):
        if hs & 1:
            a(f's_add_u32 {s(S_XO)}, {s(S_XK)}, {64*1280}')
            so = S_XO
        else:
            so = S_XK
        for g in range(2):
            a(f's_add_u32 m0, {s(S_M)}, {(hs%4)*XSLOT+g*4096}')
            for i in range(4):
                a(f'buffer_load_dwordx4 {v(vb+4*g+i)}, {s(SX,4)}, {s(so)} offen offset:{i*1024} lds')
        if hs & 1:
            a(f's_add_u32 {s(S_XK)}, {s(S_XK)}, 128')
            a(f's_cmp_eq_u32 {s(S_XK)}, 1280')
            a(f's_cselect_b32 {s(S_XK)}, 0, {s(S_XK)}')

    def iw(b):
        for g in range(2):
            a(f's_add_u32 m0, {s(S_M)}, {WBASE+(b%2)*XSLOT+g*4096}')
            for i in range(4):
                a(f'buffer_load_dwordx4 {v(vb+8+4*g+i)}, {s(SW,4)}, {s(S_WK)} offen offset:{i*1024} lds')
        a(f's_add_u32 {s(S_WK)}, {s(S_WK)}, {64*3456}')
        a(f's_cmp_eq_u32 {s(S_WK)}, {640*3456}')
        a(f's_cselect_b32 {s(S_WK)}, 0, {s(S_WK)}')
    iw(0); ix(0); ix(1); iw(1); ix(2)
    srd(a, SWS, P_WS, WS_SIZE)
    stamp(a, 1)
    a(f'v_lshlrev_b32 {v(RA)}, 2, {v(VL)}')
    a(f'v_and_b32 {v(DA)}, 3, {v(VL)}')
    a(f'v_lshl_add_u32 {v(DA)}, {v(DA)}, 8, {v(RA)}')
    a(f'v_add_u32 {v(DA)}, {F_DONE}, {v(DA)}')
    a(f's_lshl_b32 s3, {s(S_L)}, 8')
    a(f's_add_u32 s3, s3, {F_READY}')
    a(f'v_add_u32 {v(RA)}, s3, {v(RA)}')
    a(f'v_mov_b32 {v(J0)}, 1')
    a(f'v_mov_b32 {v(J1)}, 1')
    a(f's_mov_b32 {s(S_IT)}, 4')

    def sync(cnt):
        a(f's_waitcnt vmcnt({cnt})')
        a(f'ds_write_b32 {v(RA)}, {v(J1)}')

    def free():
        spin(a, [f'ds_read_b32 {v(D)}, {v(DA)}'], 's_waitcnt lgkmcnt(0)', [f'v_cmp_gt_u32 vcc, {v(J0)}, {v(D)}'], OPT.get('ldsl', 0))
        a(f'v_mov_b32 {v(J0)}, {v(J1)}')
        a(f'v_add_u32 {v(J1)}, 1, {v(J1)}')
    def acc_t(slot):
        if OPT.get('ldprof'):
            a('s_memtime s[4:5]')
            a('s_waitcnt lgkmcnt(0)')
            a('s_sub_u32 s5, s4, s100')
            a('s_mov_b32 s100, s4')
            a(f's_cmp_lt_u32 {s(S_IT)}, 4')
            a('s_cselect_b32 s5, s5, 0')
            a(f's_add_u32 {s(S_ST+2*slot)}, {s(S_ST+2*slot)}, s5')
    sync(24)
    if OPT.get('ldprof'):
        a('s_waitcnt lgkmcnt(0)')
        for k in (1, 7, 8):
            a(f's_mov_b32 {s(S_ST+2*k)}, {s(S_ST)}')
    a(f'v_mov_b32 {v(J1)}, 2')
    a.label('ld_loop')
    for j in range(4):
        sync(16 if j & 1 else 8)
        acc_t(1)
        free()
        acc_t(7)
        if j % 2 == 0:
            iw(j // 2)
        ix(j + 3)
        acc_t(8)
    stamp_it(a, S_IT, (4, 3, 2, 1), 3)
    a(f's_sub_u32 {s(S_IT)}, {s(S_IT)}, 1')
    a(f's_cmp_lg_u32 {s(S_IT)}, 0')
    a('s_cbranch_scc1 ld_loop')
    sync(8)
    free()
    ix(19)


def g1_loader_tail(a, extra):
    for cnt in (8, 0):
        if cnt == 0:
            a(f'v_mov_b32 {v(V_J1)}, 64')
        a(f's_waitcnt vmcnt({cnt+extra})')
        a(f'ds_write_b32 {v(V_RA)}, {v(V_J1)}')


class G1Regs:
    def __init__(self, base):
        b = base
        self.xa = b; b += 2
        self.wa = b; b += 2
        self.ha = b; b += 1
        self.cnt = b; b += 1
        self.fa = b; b += 1
        self.da = b; b += 1
        self.f = b; b += 1
        self.t = b; b += 3
        b = (b + 3) // 4 * 4
        self.B = b; b += 32
        self.A = [b, b + 32]; b += 64
        self.acc = b; b += 128
        self.end = b


def g1_addr(a, R):
    t = R.t
    a(f'v_and_b32 {v(t)}, 15, {v(VL)}')
    a(f'v_lshrrev_b32 {v(t+1)}, 4, {v(VL)}')
    a(f'v_lshrrev_b32 {v(t+2)}, 1, {v(t)}')
    a(f'v_xor_b32 {v(t+2)}, {v(t+1)}, {v(t+2)}')
    a(f'v_lshlrev_b32 {v(t+2)}, 4, {v(t+2)}')
    a(f'v_lshl_add_u32 {v(t)}, {v(t)}, 7, {v(t+2)}')
    a(f's_and_b32 s3, {s(S_WAVE)}, 1')
    a('s_lshl_b32 s3, s3, 13')
    a(f'v_add_u32 {v(R.xa)}, s3, {v(t)}')
    a(f'v_xor_b32 {v(R.xa+1)}, 64, {v(R.xa)}')
    a(f'v_bfe_u32 {v(t+2)}, {v(VL)}, 2, 2')
    a(f'v_lshl_add_u32 {v(t)}, {v(t+1)}, 3, {v(t+2)}')
    a(f'v_lshlrev_b32 {v(t)}, 7, {v(t)}')
    a(f'v_bfe_u32 {v(t+2)}, {v(VL)}, 3, 2')
    a(f's_and_b32 s3, {s(S_WAVE)}, 2')
    a(f'v_xor_b32 {v(t+2)}, s3, {v(t+2)}')
    a(f'v_lshl_add_u32 {v(t)}, {v(t+2)}, 5, {v(t)}')
    a(f'v_and_b32 {v(t+2)}, 3, {v(VL)}')
    a(f'v_lshl_add_u32 {v(t)}, {v(t+2)}, 3, {v(t)}')
    a(f'v_add_u32 {v(R.wa)}, {WBASE}, {v(t)}')
    a(f'v_xor_b32 {v(R.wa+1)}, 32, {v(R.wa)}')
    a(f'v_lshlrev_b32 {v(R.ha)}, 4, {v(VL)}')
    a(f'v_lshlrev_b32 {v(t)}, 2, {v(VL)}')
    a(f'v_lshrrev_b32 {v(t+1)}, 5, {v(VL)}')
    a(f'v_lshl_add_u32 {v(R.fa)}, {v(t+1)}, 8, {v(t)}')
    a(f'v_add_u32 {v(R.fa)}, {F_READY}, {v(R.fa)}')
    a(f's_lshl_b32 s3, {s(S_WAVE)}, 8')
    a(f's_add_u32 s3, s3, {F_DONE}')
    a(f'v_add_u32 {v(R.da)}, s3, {v(t)}')
    a(f'v_mov_b32 {v(R.cnt)}, 1')
    for i in range(0, 128, 2):
        a(f'v_mov_b64 {v(R.acc+i,2)}, 0')


def g1_main(a, R, cold):
    S_IT = SL

    def xr(n):
        hs, r = n >> 2, n & 3
        return [f'ds_read_b128 {v(R.B+8*(n%4)+4*k,4)}, {v(R.xa+k)} offset:{(hs%4)*XSLOT+r*2048}' for k in range(2)]

    def wr(b):
        return [f'ds_read_b64_tr_b16 {v(R.A[b&1]+8*m+4*k+2*h,2)}, {v(R.wa+(m&1))} offset:{(b%2)*XSLOT+(m>>1)*8192+k*4096+h*512}'
                for m in range(4) for k in range(2) for h in range(2)]
    rdf = f'ds_read_b32 {v(R.f)}, {v(R.fa)}'
    spin(a, [rdf], 's_waitcnt lgkmcnt(0)', [f'v_cmp_eq_u32 vcc, 0, {v(R.f)}'])
    stamp(a, 1)
    w0 = wr(0)
    a.extend(w0[:4] + xr(0) + w0[4:12])
    a('s_waitcnt lgkmcnt(8)')
    a.extend(w0[12:] + xr(1))
    a(f's_mov_b32 {s(S_IT)}, 5')
    a('s_waitcnt lgkmcnt(0)')
    a(f'ds_write_b32 {v(R.da)}, {v(R.cnt)}')
    pend = []
    body = Asm()
    for n in range(32):
        o = body if n >= 16 else Asm()
        hs, r = n >> 2, n & 3
        b = hs >> 1
        rg = 4 * (hs & 1) + r
        rd = [(x, ('x', n + 2)) for x in xr(n + 2)]
        ph = (n - 2) % 8
        bn = (n - 2) // 8 + 1
        if ph < 4:
            rd += [(x, ('w', bn)) for x in wr(bn)[4 * ph:4 * ph + 4]]
        if r == 1:
            rd += [(rdf, ('f', hs))]
        if r == 2:
            cnt = 0
        else:
            need = [i for i, tg in enumerate(pend) if tg == ('x', n) or tg == ('w', b)]
            cnt = len(pend) - 1 - max(need) if need else None
        if cnt is not None and pend:
            o(f's_waitcnt lgkmcnt({cnt})')
            pend = pend[len(pend) - cnt:] if cnt else []
        k = 0
        for m in range(4):
            acc = R.acc + 64 * (m >> 1) + 8 * rg + 4 * (m & 1)
            for kk in range(2):
                o(f'v_mfma_f32_16x16x32_bf16 {v(acc,4)}, {v(R.A[b&1]+8*m+4*kk,4)}, {v(R.B+8*(n%4)+4*kk,4)}, {v(acc,4)}')
                if r == 2 and k == 0:
                    o(f'v_cmp_le_u32 vcc, {v(R.f)}, {v(R.cnt)}')
                    o(f'v_add_u32 {v(R.cnt)}, 1, {v(R.cnt)}')
                    o(f'ds_write_b32 {v(R.da)}, {v(R.cnt)}'); pend.append(('d', hs))
                elif r == 2 and k == 1:
                    o(f's_cbranch_vccnz g1_slow{hs&3}')
                    o.label(f'g1_back{hs&3}')
                    x, tg = rd.pop(0); o(x); pend.append(tg)
                elif rd:
                    x, tg = rd.pop(0); o(x); pend.append(tg)
                if n == 31 and k == 5:
                    o(f's_sub_u32 {s(S_IT)}, {s(S_IT)}, 1')
                if n == 31 and k == 6:
                    o(f's_cmp_lg_u32 {s(S_IT)}, 0')
                k += 1
        assert not rd
    a.label('g1_loop')
    a.extend(body)
    a('s_cbranch_scc1 g1_loop')
    for h in range(4):
        cold.label(f'g1_slow{h}')
        spin(cold, [rdf], 's_waitcnt lgkmcnt(0)', [f'v_cmp_lt_u32 vcc, {v(R.f)}, {v(R.cnt)}'])
        cold(f's_branch g1_back{h}')


def g1_epilogue(a, R):
    a(f's_and_b32 s3, {s(S_WAVE)}, 1')
    a(f's_lshl_b32 s4, {s(S_RB)}, 1')
    a('s_add_u32 s3, s3, s4')
    a('s_mul_i32 s3, s3, 108')
    a(f's_lshl_b32 s4, {s(S_CT)}, 1')
    a('s_add_u32 s3, s3, s4')
    a(f's_lshr_b32 s4, {s(S_WAVE)}, 1')
    a('s_add_u32 s3, s3, s4')
    a('s_lshl_b32 s4, s3, 12')
    a(f's_add_u32 s5, s4, {54*4096}')
    a('s_waitcnt lgkmcnt(0)')
    for rg in range(8):
        g, u = R.acc + 8 * rg, R.acc + 64 + 8 * rg
        p = R.A[0] + 4 * rg
        for i in range(0, 8, 2):
            a(f'v_pk_mul_f32 {v(g+i,2)}, {v(g+i,2)}, {v(u+i,2)}')
        for i in range(4):
            a(f'v_cvt_pk_bf16_f32 {v(p+i)}, {v(g+2*i)}, {v(g+2*i+1)}')
        a(f'buffer_store_dwordx4 {v(p,4)}, {v(R.ha)}, {s(SWS,4)}, {s(4+(rg>>2))} offen offset:{(rg&3)*1024} sc1')
    a(f'v_add_u32 {v(R.cnt)}, 1, {v(R.cnt)}')
    a(f'ds_write_b32 {v(R.da)}, {v(R.cnt)}')
    stamp(a, 2)
    t = R.B
    a(f'v_mov_b32 {v(t)}, {F_MISC+M_HCNT}')
    a(f'v_mov_b32 {v(t+1)}, 1')
    a('s_waitcnt vmcnt(0)')
    a('s_mov_b64 exec, 1')
    a(f'ds_add_rtn_u32 {v(t+2)}, {v(t)}, {v(t+1)}')
    a('s_mov_b64 exec, -1')
    a('s_waitcnt lgkmcnt(0)')
    a(f'v_readfirstlane_b32 s3, {v(t+2)}')
    a('s_cmp_lg_u32 s3, 3')
    a('s_cbranch_scc1 g1_nosig')
    lds_flag_wait(a, t, M_Z)
    a(f's_lshl_b32 s3, {s(S_RB)}, 5')
    a(f's_add_u32 s3, s3, {s(S_CT)}')
    a('s_lshl_b32 s3, s3, 6')
    a(f's_add_u32 s3, s3, {hex(FL_H)}')
    flag_store(a, t, 's3')
    a.label('g1_nosig')
```

```python
import sys
from build import *
import common
from g1 import *
from ssm import *
from side import side_prep
from g2 import *


def go(a):
    a('s_waitcnt lgkmcnt(0)')
    a('s_barrier')
    stamp(a, 0)


def chan_setup(a):
    a(f's_cmp_lg_u32 {s(S_SIDE)}, 0')
    a('s_cbranch_scc1 ch_side')
    a(f's_lshr_b32 s3, {s(S_WAVE)}, 1')
    a(f's_sub_u32 s4, {s(S_WAVE)}, 4')
    a('s_cselect_b32 s3, s3, s4')
    a(f's_add_u32 {s(S_KW)}, s3, 4')
    a(f's_lshl_b32 s4, {s(S_IDX)}, 1')
    a('s_add_u32 s4, s4, 30')
    a(f's_add_u32 {s(S_CH)}, s4, s3')
    a(f's_mul_i32 s4, s3, {RA_STRIDE}')
    a(f's_add_u32 {s(S_UB)}, s4, {G_UB}')
    a(f's_mul_i32 s4, s3, {KT_SIZE}')
    a(f's_add_u32 {s(S_KT)}, s4, {G_KT}')
    a('s_lshl_b32 s4, s3, 13')
    a(f's_add_u32 {s(S_MB)}, s4, {G_MB}')
    a(f's_and_b32 s3, {s(S_WAVE)}, 1')
    a(f's_add_u32 {s(S_MODE)}, s3, 1')
    a('s_branch ch_join')
    a.label('ch_side')
    a(f's_sub_u32 s3, {s(S_WAVE)}, 2')
    a(f's_cmp_ge_u32 {s(S_WAVE)}, 6')
    a(f's_cselect_b32 {s(S_KW)}, s3, {s(S_WAVE)}')
    a(f's_sub_u32 s3, {s(S_IDX)}, 27')
    a('s_mul_i32 s3, s3, 6')
    a(f's_add_u32 {s(S_CH)}, s3, {s(S_KW)}')
    a(f's_mul_i32 s4, {s(S_KW)}, {RA_STRIDE}')
    a(f's_add_u32 {s(S_UB)}, s4, {S_UB0}')
    a(f's_mul_i32 s4, {s(S_KW)}, {KT_SIZE}')
    a(f's_add_u32 {s(S_KT)}, s4, {S_KT0}')
    a(f's_and_b32 s3, {s(S_WAVE)}, 1')
    a(f's_mul_i32 s3, s3, {PART}')
    a(f's_add_u32 {s(S_MB)}, s3, 10240')
    a(f's_lshr_b32 s3, {s(S_WAVE)}, 1')
    a('s_max_u32 s3, s3, 1')
    a(f's_sub_u32 {s(S_MODE)}, s3, 1')
    a.label('ch_join')
    a(f's_mul_i32 s3, {s(S_X)}, 80')
    a(f's_add_u32 {s(S_CH)}, {s(S_CH)}, s3')
    a(f's_cmp_eq_u32 {s(S_MODE)}, 2')
    a(f's_cselect_b32 {s(S_MOFF)}, 256, 0')
    a(f's_cmp_eq_u32 {s(S_MODE)}, 0')
    a(f's_cselect_b32 {s(S_NIT)}, 4, 2')
    a(f's_lshl_b32 {s(S_KW)}, {s(S_KW)}, 2')


def flag_off(a, base):
    a(f's_add_u32 s3, {s(S_KW)}, {base}')
    return 's3'


def fused(kmode=1):
    a = Asm()
    cold = Asm()
    a('s_cmp_ge_u32 s2, 256')
    a('s_cbranch_scc1 the_end')
    if OPT.get('hst'):
        a('s_memrealtime s[100:101]')
    a('s_load_dwordx16 s[16:31], s[0:1], 0')
    a('s_load_dwordx16 s[32:47], s[0:1], 64')
    a('s_load_dwordx2 s[48:49], s[0:1], 128')
    a('v_lshrrev_b32 v2, 6, v0')
    a(f'v_and_b32 {v(VL)}, 63, v0')
    a(f'v_readfirstlane_b32 {s(S_WAVE)}, v2')
    a('v_lshlrev_b32 v0, 2, v0')
    a(f'v_add_u32 v0, {FB}, v0')
    a('v_mov_b32 v2, 0')
    a('ds_write_b32 v0, v2')
    stamp_init(a)
    a(f's_and_b32 {s(S_X)}, s2, 7')
    a(f's_lshr_b32 {s(S_IDX)}, s2, 3')
    a(f's_lshr_b32 {s(S_CG)}, {s(S_IDX)}, 2')
    a(f's_and_b32 s3, {s(S_IDX)}, 3')
    a(f's_lshl2_add_u32 {s(S_R2)}, {s(S_X)}, s3')
    a(f's_mov_b32 {s(S_TMO)}, 0x10000')
    a(f's_lshr_b32 s3, {s(S_X)}, 1')
    a('s_mul_i32 s3, s3, 27')
    a(f's_add_u32 s3, s3, {s(S_IDX)}')
    a(f's_lshr_b32 {s(S_CT)}, s3, 2')
    a('s_and_b32 s3, s3, 3')
    a(f's_and_b32 s4, {s(S_X)}, 1')
    a(f's_lshl2_add_u32 {s(S_RB)}, s4, s3')
    a(f's_mov_b32 {s(S_AT)}, {G_AT}')
    a(f's_cmp_ge_u32 {s(S_IDX)}, 27')
    a(f's_cselect_b32 {s(S_SIDE)}, 1, 0')
    a(f's_cselect_b32 {s(S_AT)}, {S_AT0}, {s(S_AT)}')
    a('s_cbranch_scc1 not_ld')
    a(f's_cmp_lt_u32 {s(S_WAVE)}, 6')
    a('s_cbranch_scc1 not_ld')
    g1_loader(a, kmode, go)
    if OPT.get('noload'):
        a.lines = [l for l in a.lines if not l.endswith(' lds')]
    stamp(a, 2)
    a('s_branch g2pre')

    a.label('not_ld')
    chan_setup(a)
    a(f's_cmp_lt_u32 {s(S_WAVE)}, 6')
    a('s_cbranch_scc1 not_prep')
    side_prep(a, go)
    a('s_branch late_conv')

    a.label('not_prep')
    a(f's_lshl_b32 s3, {s(S_SIDE)}, 2')
    a(f's_add_u32 s3, s3, {s(S_WAVE)}')
    a('s_cmp_ge_u32 s3, 4')
    a('s_cbranch_scc1 kgen')
    R = G1Regs(4)
    g1_addr(a, R)
    go(a)
    srd(a, SWS, P_WS, WS_SIZE)
    if OPT.get('gprio'):
        a(f's_setprio {OPT["gprio"]}')
    g1_main(a, R, cold)
    g1_epilogue(a, R)
    stamp(a, 3)
    a(f's_cmp_ge_u32 {s(S_IDX)}, 25')
    a('s_cbranch_scc1 atload')
    a.label('late_conv')
    C = ConvRegs(4)
    conv_addr(a, C, S_UB, S_KT, S_CH, VL)
    lds_flag_wait(a, C.t, flag_off(a, M_RDY), 1)
    a.label('conv')
    conv_body(a, C)
    stamp(a, 4, 2)
    a(f'v_lshlrev_b32 {v(C.ga)}, 4, {v(VL)}')
    a(f'v_add_u32 {v(C.ga)}, {s(S_MB)}, {v(C.ga)}')
    a(f's_cmp_eq_u32 {s(S_MODE)}, 0')
    a('s_cbranch_scc1 cv_store')
    a(f's_cmp_eq_u32 {s(S_MODE)}, 1')
    a('s_cbranch_scc1 cv_a')
    a(f's_cmp_eq_u32 {s(S_SIDE)}, 0')
    a('s_cbranch_scc1 cv_mb')
    lds_flag_wait(a, C.t, M_STG + 24, 1, 2)
    a.label('cv_mb')
    for c in range(8):
        a(f'ds_write_b128 {v(C.ga)}, {v(C.acc+4*c,4)} offset:{c*1024}')
    lds_flag_set(a, C.t, flag_off(a, M_MBF))
    a('s_branch cv_next')
    a.label('cv_a')
    lds_flag_wait(a, C.t, flag_off(a, M_MBF))
    for c in range(8):
        a(f'ds_read_b128 {v(C.G[0]+4*c,4)}, {v(C.ga)} offset:{c*1024}')
    lds_flag_set(a, C.t, flag_off(a, M_CDONE))
    for c in range(8):
        a(f's_waitcnt lgkmcnt({8-c})')
        for i in (0, 2):
            a(f'v_pk_add_f32 {v(C.acc+4*c+i,2)}, {v(C.acc+4*c+i,2)}, {v(C.G[0]+4*c+i,2)}')
    a.label('cv_store')
    conv_store(a, C)
    a(f's_lshl_b32 s3, {s(S_X)}, 7')
    a(f's_add_u32 s3, s3, {hex(FL_CA)}')
    a(f'v_mov_b32 {v(C.t)}, 0')
    a(f'v_mov_b32 {v(C.t+1)}, 1')
    a('s_waitcnt vmcnt(0)')
    a('s_mov_b64 exec, 1')
    a(f'buffer_atomic_add {v(C.t+1)}, {v(C.t)}, {s(SWS,4)}, s3 offen sc0 sc1')
    a('s_mov_b64 exec, -1')
    a(f's_lshl_b32 s3, {s(S_X)}, 12')
    a(f's_add_u32 s3, s3, {hex(FL_GA)}')
    a(f'v_lshlrev_b32 {v(C.ga)}, 7, {v(VL)}')
    a(f'v_mov_b32 {v(C.oa)}, 1')
    a('s_waitcnt vmcnt(0)')
    a(f'v_readfirstlane_b32 s4, {v(C.t+1)}')
    a('s_cmp_lg_u32 s4, 79')
    a('s_cbranch_scc1 cv_next')
    a('s_mov_b32 exec_hi, 0')
    a(f'buffer_store_dword {v(C.oa)}, {v(C.ga)}, {s(SWS,4)}, s3 offen sc1')
    a('s_mov_b32 exec_hi, -1')
    a.label('cv_next')
    a(f's_cmp_ge_u32 {s(S_WAVE)}, 4')
    a('s_cbranch_scc1 g2pre')
    a.label('atload')
    atload(a)
    a('s_branch final')

    a.label('kgen')
    K = KgenRegs(4)
    kgen_addr(a, K, S_UB, VL)
    for i in range(0, 16, 2):
        a(f'v_mov_b64 {v(K.acc+i,2)}, 0')
    go(a)
    srd(a, SWS, P_WS, WS_SIZE)
    a(f's_sub_u32 s3, {s(S_IDX)}, 25')
    a('s_cmp_lt_u32 s3, 2')
    a('s_cbranch_scc1 kg_skip')
    kgen_loads(a, K, P_PAR, P_LDT, P_DSK, S_CH, VL)
    a('s_waitcnt vmcnt(0)')
    stamp(a, 1)
    if OPT.get('kprio'):
        a(f's_setprio {OPT["kprio"]}')
    kgen_body(a, K)
    z = kexpand(a, K, S_KT, VL)
    a(f'v_mov_b32 v2, {s(S_UB)}')
    for o in (0, 16, U_COPY, U_COPY + 16):
        a(f'ds_write_b128 v2, {v(z,4)} offset:{o}')
    a.label('kg_skip')
    stamp(a, 2)
    ut_poll(a, 2)
    stamp(a, 3)
    a(f's_sub_u32 s3, {s(S_IDX)}, 25')
    a('s_cmp_lt_u32 s3, 2')
    a('s_cbranch_scc1 g2pre')
    utab(a, 4, 8)
    lds_flag_set(a, 2, flag_off(a, M_RDY))
    a(f's_cmp_eq_u32 {s(S_SIDE)}, 0')
    a('s_cbranch_scc1 g2pre')
    conv_addr(a, C, S_UB, S_KT, S_CH, VL)
    a('s_branch conv')

    a.extend(cold)
    a.label('g2pre')
    g2_pre(a)
    g2_main(a)
    final(a)
    if not OPT.get('ldprof'):
        stamp(a, 8)
    stamp_dump(a, 2)
    if OPT.get('hst'):
        a('s_waitcnt vmcnt(0)')
        a('s_memrealtime s[98:99]')
        a('s_mul_i32 s3, s2, 1772')
        a('s_lshr_b32 s3, s3, 16')
        a('s_mul_i32 s5, s3, 37')
        a('s_cmp_lg_u32 s5, s2')
        a('s_cbranch_scc1 the_end')
        a(f's_cmp_lg_u32 {s(S_WAVE)}, 0')
        a('s_cbranch_scc1 the_end')
        a('s_lshl_b32 s3, s3, 3')
        a('s_add_u32 s3, s3, 8')
        a('s_waitcnt lgkmcnt(0)')
        a('v_mov_b32 v2, s100')
        a('v_mov_b32 v3, s98')
        a('v_mov_b32 v4, s3')
        a('s_mov_b64 exec, 1')
        a(f'global_store_dwordx2 v4, v[2:3], {s(P_DBG,2)}')
    a.label('the_end')
    a('s_endpgm')
    return a


if __name__ == '__main__':
    out = sys.argv[1]
    common.STAMPS[0] = 2 if 'st' in sys.argv[2:] else 3 if 'st1' in sys.argv[2:] else 0
    km = 1
    if 'cyc' in sys.argv[2:]:
        common.CLK[0] = 's_memtime'
    for o in sys.argv[2:]:
        if o.startswith('k='):
            km = int(o[2:])
        elif '=' in o:
            OPT[o.split('=')[0]] = int(o.split('=')[1])
    a = fused(km)
    write(out, [(NAME + '_kernel', 256, 512, LDS_SIZE)], [(NAME + '_kernel', a, 256)])
```

```python
from common import *

XSLOT = 16384
WBASE = 65536


def k0_of(a, mode):
    if mode == 0:
        a(f's_mov_b32 {s(S_K0)}, 0')
        return
    a(f's_and_b32 s3, {s(S_RB)}, 3')
    a('s_lshl_b32 s3, s3, 2')
    a('s_lshr_b32 s3, 0x8530, s3')
    a('s_and_b32 s3, s3, 15')
    if mode == 2:
        a('s_mov_b32 s3, 0')
    if mode != 3:
        a(f's_add_u32 s3, s3, {s(S_CT)}')
    a('s_mul_i32 s4, s3, 205')
    a('s_lshr_b32 s4, s4, 11')
    a('s_mul_i32 s4, s4, 10')
    a(f's_sub_u32 {s(S_K0)}, s3, s4')


def g1_loader(a, kmode, go):
    vb = 4
    t = vb + 16
    DA, D = t + 7, t + 8
    S_XK, S_WK, S_M, S_XO, S_IT, S_L = SL, SL + 1, SL + 2, SL + 3, SL + 4, SL + 5
    k0_of(a, kmode)
    a(f's_and_b32 {s(S_L)}, {s(S_WAVE)}, 1')
    a(f'v_lshrrev_b32 {v(t)}, 3, {v(VL)}')
    a(f'v_lshrrev_b32 {v(t+1)}, 4, {v(VL)}')
    a(f'v_xor_b32 {v(t+1)}, {v(t+1)}, {v(VL)}')
    a(f'v_and_b32 {v(t+1)}, 7, {v(t+1)}')
    a(f's_lshl_b32 s3, {s(S_RB)}, 1')
    a(f's_add_u32 s3, s3, {s(S_L)}')
    a(f's_mul_i32 s3, s3, {128*1280}')
    a(f'v_mul_u32_u24 {v(t+2)}, 1280, {v(t)}')
    a(f'v_add_u32 {v(t+2)}, s3, {v(t+2)}')
    a(f'v_lshl_add_u32 {v(vb)}, {v(t+1)}, 4, {v(t+2)}')
    a(f'v_xor_b32 {v(t+3)}, 64, {v(vb)}')
    for i in range(1, 8):
        a(f'v_add_u32 {v(vb+i)}, {i*8*1280-(i&3)*1024}, {v(vb if i % 2 == 0 else t+3)}')
    a(f'v_lshrrev_b32 {v(t+1)}, 3, {v(VL)}')
    a(f'v_and_b32 {v(t+1)}, 2, {v(t+1)}')
    a(f'v_xor_b32 {v(t+1)}, {v(t+1)}, {v(VL)}')
    a(f'v_and_b32 {v(t+1)}, 7, {v(t+1)}')
    a(f'v_mul_u32_u24 {v(t+2)}, 3456, {v(t)}')
    a(f's_lshl_b32 s3, {s(S_CT)}, 7')
    a(f'v_add_u32 {v(t+2)}, s3, {v(t+2)}')
    a(f'v_lshl_add_u32 {v(vb+8)}, {v(t+1)}, 4, {v(t+2)}')
    a(f'v_xor_b32 {v(t+3)}, 64, {v(vb+8)}')
    for i in range(1, 8):
        a(f'v_add_u32 {v(vb+8+i)}, {i*8*3456-(i&3)*1024}, {v(vb+8 if i % 2 == 0 else t+3)}')
    a(f's_lshl_b32 {s(S_XK)}, {s(S_K0)}, 7')
    a(f's_mul_i32 {s(S_WK)}, {s(S_K0)}, {64*3456}')
    a(f's_lshl_b32 {s(S_M)}, {s(S_L)}, 13')
    go(a)
    a(f's_cmp_eq_u32 {s(S_L)}, 1')
    a(f's_cselect_b32 {s(P_WG)}, {s(P_WU)}, {s(P_WG)}')
    a(f's_cselect_b32 {s(P_WG+1)}, {s(P_WU+1)}, {s(P_WG+1)}')
    srd(a, SW, P_WG, W_BYTES)
    srd(a, SX, P_X, X_BYTES)

    def ix(hs):
        if hs & 1:
            a(f's_add_u32 {s(S_XO)}, {s(S_XK)}, {64*1280}')
            so = S_XO
        else:
            so = S_XK
        for g in range(2):
            a(f's_add_u32 m0, {s(S_M)}, {(hs%4)*XSLOT+g*4096}')
            for i in range(4):
                a(f'buffer_load_dwordx4 {v(vb+4*g+i)}, {s(SX,4)}, {s(so)} offen offset:{i*1024} lds')
        if hs & 1:
            a(f's_add_u32 {s(S_XK)}, {s(S_XK)}, 128')
            a(f's_cmp_eq_u32 {s(S_XK)}, 1280')
            a(f's_cselect_b32 {s(S_XK)}, 0, {s(S_XK)}')

    def iw(b):
        for g in range(2):
            a(f's_add_u32 m0, {s(S_M)}, {WBASE+(b%2)*XSLOT+g*4096}')
            for i in range(4):
                a(f'buffer_load_dwordx4 {v(vb+8+4*g+i)}, {s(SW,4)}, {s(S_WK)} offen offset:{i*1024} lds')
        a(f's_add_u32 {s(S_WK)}, {s(S_WK)}, {64*3456}')
        a(f's_cmp_eq_u32 {s(S_WK)}, {640*3456}')
        a(f's_cselect_b32 {s(S_WK)}, 0, {s(S_WK)}')
    S_F = SL + 6

    def ready(k):
        a(f's_add_u32 m0, {s(S_F)}, {32*k}')
        a('s_mov_b64 exec, 1')
        a(f'buffer_load_dword {v(vb)}, {s(SX,4)}, {s(SX+2)} offen lds')
        a('s_mov_b64 exec, -1')
    a(f's_lshl2_add_u32 {s(S_F)}, {s(S_L)}, {FB+16}')
    iw(0); ix(0); ready(0); ix(1); iw(1); ready(1); ix(2); ready(2)
    srd(a, SWS, P_WS, WS_SIZE)
    stamp(a, 1)
    a(f'v_and_b32 {v(DA)}, 3, {v(VL)}')
    a(f'v_lshlrev_b32 {v(DA)}, 2, {v(DA)}')
    a(f'v_add_u32 {v(DA)}, {FB}, {v(DA)}')
    a(f's_mov_b32 {s(S_IT)}, 4')

    def free(k):
        spin(a, [f'ds_read_b32 {v(D)}, {v(DA)} offset:{32*k}'], 's_waitcnt lgkmcnt(0)', [f'v_cmp_ne_u32 vcc, 0, {v(D)}'], OPT.get('ldsl', 0))
    a.label('ld_loop')
    for j in range(4):
        free(j)
        if j % 2 == 0:
            iw(j // 2)
        ix(j + 3)
        ready(j + 3)
    stamp_it(a, S_IT, (4, 3, 2, 1), 3)
    a(f'v_add_u32 {v(DA)}, 128, {v(DA)}')
    a(f's_add_u32 {s(S_F)}, {s(S_F)}, 128')
    a(f's_sub_u32 {s(S_IT)}, {s(S_IT)}, 1')
    a(f's_cmp_lg_u32 {s(S_IT)}, 0')
    a('s_cbranch_scc1 ld_loop')
    free(0)
    ix(19)
    ready(3)
    ready(4)


class G1Regs:
    def __init__(self, base):
        b = base
        self.xa = b; b += 2
        self.wa = b; b += 2
        self.ha = b; b += 1
        self.fa = b; b += 1
        self.f = b; b += 1
        self.t = b; b += 3
        b = (b + 3) // 4 * 4
        self.B = b; b += 32
        self.A = [b, b + 32]; b += 64
        self.acc = b; b += 128
        self.end = b


def g1_addr(a, R):
    t = R.t
    a(f'v_and_b32 {v(t)}, 15, {v(VL)}')
    a(f'v_lshrrev_b32 {v(t+1)}, 4, {v(VL)}')
    a(f'v_lshrrev_b32 {v(t+2)}, 1, {v(t)}')
    a(f'v_xor_b32 {v(t+2)}, {v(t+1)}, {v(t+2)}')
    a(f'v_lshlrev_b32 {v(t+2)}, 4, {v(t+2)}')
    a(f'v_lshl_add_u32 {v(t)}, {v(t)}, 7, {v(t+2)}')
    a(f's_and_b32 s3, {s(S_WAVE)}, 1')
    a('s_lshl_b32 s3, s3, 13')
    a(f'v_add_u32 {v(R.xa)}, s3, {v(t)}')
    a(f'v_xor_b32 {v(R.xa+1)}, 64, {v(R.xa)}')
    a(f'v_bfe_u32 {v(t+2)}, {v(VL)}, 2, 2')
    a(f'v_lshl_add_u32 {v(t)}, {v(t+1)}, 3, {v(t+2)}')
    a(f'v_lshlrev_b32 {v(t)}, 7, {v(t)}')
    a(f'v_bfe_u32 {v(t+2)}, {v(VL)}, 3, 2')
    a(f's_and_b32 s3, {s(S_WAVE)}, 2')
    a(f'v_xor_b32 {v(t+2)}, s3, {v(t+2)}')
    a(f'v_lshl_add_u32 {v(t)}, {v(t+2)}, 5, {v(t)}')
    a(f'v_and_b32 {v(t+2)}, 3, {v(VL)}')
    a(f'v_lshl_add_u32 {v(t)}, {v(t+2)}, 3, {v(t)}')
    a(f'v_add_u32 {v(R.wa)}, {WBASE}, {v(t)}')
    a(f'v_xor_b32 {v(R.wa+1)}, 32, {v(R.wa)}')
    a(f'v_lshlrev_b32 {v(R.ha)}, 4, {v(VL)}')
    a(f'v_and_b32 {v(t)}, 1, {v(VL)}')
    a(f'v_lshlrev_b32 {v(t)}, 2, {v(t)}')
    a(f'v_add_u32 {v(R.fa)}, {FB+16}, {v(t)}')
    a(f's_lshl2_add_u32 m0, {s(S_WAVE)}, {FB}')
    for i in range(0, 128, 2):
        a(f'v_mov_b64 {v(R.acc+i,2)}, 0')


def g1_main(a, R, cold):
    S_IT = SL

    def xr(n):
        hs, r = n >> 2, n & 3
        return [f'ds_read_b128 {v(R.B+8*(n%4)+4*k,4)}, {v(R.xa+k)} offset:{(hs%4)*XSLOT+r*2048}' for k in range(2)]

    def wr(b):
        return [f'ds_read_b64_tr_b16 {v(R.A[b&1]+8*m+4*k+2*h,2)}, {v(R.wa+(m&1))} offset:{(b%2)*XSLOT+(m>>1)*8192+k*4096+h*512}'
                for m in range(4) for k in range(2) for h in range(2)]
    def rdf(k):
        return f'ds_read_b32 {v(R.f)}, {v(R.fa)} offset:{32*k}'
    spin(a, [rdf(0)], 's_waitcnt lgkmcnt(0)', [f'v_cmp_ne_u32 vcc, 0, {v(R.f)}'])
    stamp(a, 1)
    w0 = wr(0)
    a.extend(w0[:4] + xr(0) + w0[4:12])
    a('s_waitcnt lgkmcnt(8)')
    a.extend(w0[12:] + xr(1))
    a(f's_mov_b32 {s(S_IT)}, 5')
    a('s_waitcnt lgkmcnt(0)')
    if OPT.get('mprof'):
        for k in (4, 5, 6):
            a(f's_mov_b32 {s(S_ST+2*k)}, {s(S_ST)}')
    done(a, R, 0)
    pend = []
    body = Asm()
    for n in range(32):
        o = body if n >= 16 else Asm()
        hs, r = n >> 2, n & 3
        b = hs >> 1
        rg = 4 * (hs & 1) + r
        rd = [(x, ('x', n + 2)) for x in xr(n + 2)]
        ph = (n - 2) % 8
        bn = (n - 2) // 8 + 1
        if ph < 4:
            rd += [(x, ('w', bn)) for x in wr(bn)[4 * ph:4 * ph + 4]]
        if r == 1:
            rd = [(rdf((hs & 3) + 1), ('f', hs))] + rd
        if r == 2:
            cnt = 0
        else:
            need = [i for i, tg in enumerate(pend) if tg == ('x', n) or tg == ('w', b)]
            cnt = len(pend) - 1 - max(need) if need else None
        if cnt is not None and pend:
            o(f's_waitcnt lgkmcnt({cnt})')
            pend = pend[len(pend) - cnt:] if cnt else []
        k = 0
        for m in range(4):
            acc = R.acc + 64 * (m >> 1) + 8 * rg + 4 * (m & 1)
            for kk in range(2):
                o(f'v_mfma_f32_16x16x32_bf16 {v(acc,4)}, {v(R.A[b&1]+8*m+4*kk,4)}, {v(R.B+8*(n%4)+4*kk,4)}, {v(acc,4)}')
                if r == 2 and k == 0:
                    o(f'v_cmp_ne_u32 vcc, 0, {v(R.f)}')
                    done(o, R, (hs & 3) + 1)
                elif r == 2 and k == 1:
                    o(f's_cbranch_vccnz g1_slow{hs&3}')
                    o.label(f'g1_back{hs&3}')
                    x, tg = rd.pop(0); o(x); pend.append(tg)
                elif rd:
                    x, tg = rd.pop(0); o(x); pend.append(tg)
                if n == 31 and k == 3:
                    o(f'v_add_u32 {v(R.fa)}, 128, {v(R.fa)}')
                if n == 31 and k == 4:
                    o('s_add_u32 m0, m0, 128')
                if n == 31 and k == 5:
                    o(f's_sub_u32 {s(S_IT)}, {s(S_IT)}, 1')
                if n == 31 and k == 6:
                    o(f's_cmp_lg_u32 {s(S_IT)}, 0')
                k += 1
        assert not rd
    a.label('g1_loop')
    a.extend(body)
    if OPT.get('mprof'):
        a('s_memtime s[4:5]')
        a('s_waitcnt lgkmcnt(0)')
        a(f's_cmp_eq_u32 {s(S_IT)}, 3')
        a(f's_cselect_b32 {s(S_ST+2*7)}, s4, {s(S_ST+2*7)}')
        a(f's_cmp_lg_u32 {s(S_IT)}, 0')
    a('s_cbranch_scc1 g1_loop')
    for h in range(4):
        cold.label(f'g1_slow{h}')
        if OPT.get('mprof'):
            cold('s_memtime s[100:101]')
        spin(cold, [rdf(h + 1)], 's_waitcnt lgkmcnt(0)', [f'v_cmp_ne_u32 vcc, 0, {v(R.f)}'])
        if OPT.get('mprof'):
            cold('s_memtime s[4:5]')
            cold('s_waitcnt lgkmcnt(0)')
            cold('s_sub_u32 s5, s4, s100')
            cold(f's_cmp_lt_u32 {s(S_IT)}, 4')
            cold('s_cselect_b32 s4, s5, 0')
            cold(f's_add_u32 {s(S_ST+2*5)}, {s(S_ST+2*5)}, s4')
            cold(f's_cmp_lt_u32 {s(S_IT)}, 4')
            cold('s_cselect_b32 s4, 0, s5')
            cold(f's_add_u32 {s(S_ST+2*4)}, {s(S_ST+2*4)}, s4')
            cold(f's_cmp_lt_u32 {s(S_IT)}, 4')
            cold('s_cselect_b32 s4, 1000, 0')
            cold(f's_add_u32 {s(S_ST+2*6)}, {s(S_ST+2*6)}, s4')
        cold(f's_branch g1_back{h}')


def done(a, R, k):
    a('s_mov_b64 exec, 1')
    a(f'buffer_load_dword {v(R.ha)}, {s(SWS,4)}, {s(SWS+2)} offen offset:{32*k} lds')
    a('s_mov_b64 exec, -1')


def g1_epilogue(a, R):
    a(f's_and_b32 s3, {s(S_WAVE)}, 1')
    a(f's_lshl_b32 s4, {s(S_RB)}, 1')
    a('s_add_u32 s3, s3, s4')
    a('s_mul_i32 s3, s3, 108')
    a(f's_lshl_b32 s4, {s(S_CT)}, 1')
    a('s_add_u32 s3, s3, s4')
    a(f's_lshr_b32 s4, {s(S_WAVE)}, 1')
    a('s_add_u32 s3, s3, s4')
    a('s_lshl_b32 s4, s3, 12')
    a(f's_add_u32 s5, s4, {54*4096}')
    a('s_waitcnt lgkmcnt(0)')
    for rg in range(8):
        g, u = R.acc + 8 * rg, R.acc + 64 + 8 * rg
        p = R.A[0] + 4 * rg
        for i in range(0, 8, 2):
            a(f'v_pk_mul_f32 {v(g+i,2)}, {v(g+i,2)}, {v(u+i,2)}')
        for i in range(4):
            a(f'v_cvt_pk_bf16_f32 {v(p+i)}, {v(g+2*i)}, {v(g+2*i+1)}')
        a(f'buffer_store_dwordx4 {v(p,4)}, {v(R.ha)}, {s(SWS,4)}, {s(4+(rg>>2))} offen offset:{(rg&3)*1024} sc1')
    done(a, R, 1)
    stamp(a, 2)
    t = R.B
    a(f'v_mov_b32 {v(t)}, {F_MISC+M_HCNT}')
    a(f'v_mov_b32 {v(t+1)}, 1')
    a('s_waitcnt vmcnt(0)')
    a('s_mov_b64 exec, 1')
    a(f'ds_add_rtn_u32 {v(t+2)}, {v(t)}, {v(t+1)}')
    a('s_mov_b64 exec, -1')
    a('s_waitcnt lgkmcnt(0)')
    a(f'v_readfirstlane_b32 s3, {v(t+2)}')
    a('s_cmp_lg_u32 s3, 3')
    a('s_cbranch_scc1 g1_nosig')
    if not OPT.get('x'):
        lds_flag_wait(a, t, M_Z)
    a(f's_lshl_b32 s3, {s(S_RB)}, 5')
    a(f's_add_u32 s3, s3, {s(S_CT)}')
    a('s_lshl_b32 s3, s3, 6')
    a(f's_add_u32 s3, s3, {hex(FL_H)}')
    flag_store(a, t, 's3')
    a.label('g1_nosig')
```

```python
from asmlib import *
WS_H = 0
WS_AT = 0x700000
WS_G = 0xA00000
WS_FL = 0xA40000
FL_PART = 10240
FL_H = WS_FL
FL_P = WS_FL + 0x8000
FL_U = WS_FL + 0x10000
FL_W = WS_FL + 0x12800
FL_CA = WS_FL + 0x13800
WS_STAMP = 0xB00000
WS_UT = 0xC00000
WS_WP = 0x1000000
WS_KT = 0x1400000
KT_G = 8448
WS_SIZE = 0x1A00000
X_BYTES = 2048 * 1280
W_BYTES = 640 * 3456
NAME = 'gated_mix__ssm_conv_s4__glu_gated_bilinear__prompt'

S_WAVE, S_RB, S_CT, S_K0, S_X, S_IDX, S_TMO, S_R2, S_CG, S_SIDE = 6, 7, 8, 9, 10, 11, 12, 13, 14, 15
P_X, P_PAR, P_LDT, P_DSK, P_WG, P_WU, P_WD, P_GW, P_OUT, P_DBG, P_WS = 16, 18, 30, 32, 36, 38, 40, 42, 44, 46, 48
SX, SW, SWS, SO = 52, 56, 60, 64
S_CH, S_TT, S_GT, S_MOFF, S_NIT, S_MODE, S_MB, S_AT = 68, 69, 70, 71, 72, 73, 74, 75
SL = 76
VL = 1
S_KW = 50
S_PL = 51

LDS_SIZE = 163840
FB = 161792
O_R19, O_FREE, O_TAB = FB + 32, FB + 64, FB + 96
F_MISC = FB + 1536
M_TAIL, M_U, M_MBF, M_CDONE, M_KP = 0, 32, 48, 96, 144
RA_STRIDE = 8736
G_TT, G_GT, G_MB, G_AT = 98304, 115776, 124928, 141312
S_TT0, S_GT0 = 81920, 134336
S_AT0 = S_TT0 + 4 * RA_STRIDE
PART = 20480
G_STG = G_GT
GT_SIZE = 4576
T_COPY = 4160


def srd(a, d, p, nbytes):
    a(f's_mov_b32 {s(d)}, {s(p)}')
    a(f's_mov_b32 {s(d+1)}, {s(p+1)}')
    a(f's_mov_b32 {s(d+2)}, {hex(nbytes)}')
    a(f's_mov_b32 {s(d+3)}, 0x20000')


_uid = [0]


def uid(p):
    _uid[0] += 1
    return f'{p}_{_uid[0]}'


def spin(a, loads, wait, cmp, sleep=0):
    n = uid('spin')
    a.label(n)
    a.extend(loads)
    a(wait)
    a.extend(cmp)
    a(f's_cbranch_vccz {n}_ok')
    if sleep:
        a(f's_sleep {sleep}')
    a(f's_sub_u32 {s(S_TMO)}, {s(S_TMO)}, 1')
    a(f's_cbranch_scc0 {n}')
    a(f's_mov_b32 {s(S_TMO)}, 0')
    a.label(n + '_ok')


def lds_flag_wait(a, vt, off, sleep=0, nwords=1):
    if isinstance(off, int):
        if nwords == 1:
            a(f'v_mov_b32 {v(vt)}, {F_MISC+off}')
        else:
            a(f'v_and_b32 {v(vt)}, {nwords-1}, {v(VL)}')
            a(f'v_lshlrev_b32 {v(vt)}, 2, {v(vt)}')
            a(f'v_add_u32 {v(vt)}, {F_MISC+off}, {v(vt)}')
    else:
        a(f'v_mov_b32 {v(vt)}, {off}')
        a(f'v_add_u32 {v(vt)}, {F_MISC}, {v(vt)}')
    spin(a, [f'ds_read_b32 {v(vt+1)}, {v(vt)}'], 's_waitcnt lgkmcnt(0)', [f'v_cmp_eq_u32 vcc, 0, {v(vt+1)}'], sleep)


def lds_flag_set(a, vt, off):
    if isinstance(off, int):
        a(f'v_mov_b32 {v(vt)}, {F_MISC+off}')
    else:
        a(f'v_mov_b32 {v(vt)}, {off}')
        a(f'v_add_u32 {v(vt)}, {F_MISC}, {v(vt)}')
    a(f'v_mov_b32 {v(vt+1)}, 1')
    a(f'ds_write_b32 {v(vt)}, {v(vt+1)}')


def flag_store(a, vt, s_off):
    a(f'v_mov_b32 {v(vt)}, 0')
    a(f'v_mov_b32 {v(vt+1)}, 1')
    a('s_mov_b64 exec, 1')
    a(f'buffer_store_dword {v(vt+1)}, {v(vt)}, {s(SWS,4)}, {s_off} offen sc1')
    a('s_mov_b64 exec, -1')


def oob_flag(a, vaddr, srd_, off=0):
    a('s_mov_b64 exec, 1')
    a(f'buffer_load_dword {v(vaddr)}, {s(srd_,4)}, {s(srd_+2)} offen offset:{off} lds')
    a('s_mov_b64 exec, -1')


def oob_wait(a, vt, addr, nwords, sleep=0):
    if nwords == 1:
        a(f'v_mov_b32 {v(vt)}, {addr}')
    else:
        a(f'v_and_b32 {v(vt)}, {nwords-1}, {v(VL)}')
        a(f'v_lshlrev_b32 {v(vt)}, 2, {v(vt)}')
        a(f'v_add_u32 {v(vt)}, {addr}, {v(vt)}')
    spin(a, [f'ds_read_b32 {v(vt+1)}, {v(vt)}'], 's_waitcnt lgkmcnt(0)', [f'v_cmp_ne_u32 vcc, 0, {v(vt+1)}'], sleep)


def priv_wait(a, d, cond, sleep=1):
    n = uid('pw')
    a.label(n)
    a(f's_buffer_load_dwordx4 {s(d,4)}, {s(SWS,4)}, {s(S_PL)} glc')
    a('s_waitcnt lgkmcnt(0)')
    a.extend(cond)
    a(f's_cbranch_scc1 {n}_ok')
    if sleep:
        a(f's_sleep {sleep}')
    a(f's_sub_u32 {s(S_TMO)}, {s(S_TMO)}, 1')
    a(f's_cbranch_scc0 {n}')
    a(f's_mov_b32 {s(S_TMO)}, 0')
    a.label(n + '_ok')


def z_load(vt):
    return [f'v_and_b32 {v(vt)}, 7, {v(VL)}', f'v_lshlrev_b32 {v(vt)}, 2, {v(vt)}',
            f'global_load_dword {v(vt)}, {v(vt)}, {s(P_DBG,2)} sc1']


def z_check(a, vt):
    n = uid('zc')
    cmp = [f'v_cmp_ne_u32 vcc, 1, {v(vt)}']
    a.extend(cmp)
    a(f's_cbranch_vccz {n}')
    spin(a, z_load(vt), 's_waitcnt vmcnt(0)', cmp, 2)
    a.label(n)


S_PW = 32
S_FW = 16


def fw_load(a):
    a(f's_and_b32 s3, {s(S_WAVE)}, 3')
    a(f's_lshl2_add_u32 s3, {s(S_CG)}, s3')
    a('s_lshl_b32 s3, s3, 7')
    a(f's_add_u32 s3, s3, {hex(FL_W)}')
    a(f's_buffer_load_dwordx16 {s(S_FW,16)}, {s(SWS,4)}, s3 glc')


def fw_wait(a):
    n = uid('fw')
    a.label(n)
    a('s_waitcnt lgkmcnt(0)')
    a(f's_bitcmp1_b32 {s(S_WAVE)}, 1')
    a(f's_cselect_b32 {s(S_FW+13)}, 1, {s(S_FW+13)}')
    for i in range(2, 14, 2):
        a(f's_and_b64 {s(S_FW,2)}, {s(S_FW,2)}, {s(S_FW+i,2)}')
    a(f's_and_b32 {s(S_FW)}, {s(S_FW)}, {s(S_FW+1)}')
    a(f's_cmp_eq_u32 {s(S_FW)}, 1')
    a(f's_cbranch_scc1 {n}_ok')
    a('s_sleep 2')
    fw_load(a)
    a(f's_sub_u32 {s(S_TMO)}, {s(S_TMO)}, 1')
    a(f's_cbranch_scc0 {n}')
    a(f's_mov_b32 {s(S_TMO)}, 0')
    a('s_waitcnt lgkmcnt(0)')
    a.label(n + '_ok')


OPT = {}
STAMPS = [False]
CLK = ['s_memrealtime']
S_ST = 82


def stamp(a, slot, grp=1):
    if STAMPS[0] and (grp == 1 or grp == STAMPS[0]):
        a(f'{CLK[0]} {s(S_ST+2*slot,2)}')


def stamp_it(a, s_it, vals, slot0, grp=3):
    if STAMPS[0] == grp:
        a(f'{CLK[0]} s[4:5]')
        a('s_waitcnt lgkmcnt(0)')
        for i, x in enumerate(vals):
            a(f's_cmp_eq_u32 {s(s_it)}, {x}')
            a(f's_cselect_b32 {s(S_ST+2*(slot0+i))}, s4, {s(S_ST+2*(slot0+i))}')


def stamp_init(a):
    if STAMPS[0]:
        for i in range(9):
            a(f's_mov_b32 {s(S_ST+2*i)}, 0')


def stamp_dump(a, vt):
    if not STAMPS[0]:
        return
    a('s_waitcnt lgkmcnt(0)')
    a(f'v_mov_b32 {v(vt)}, 0')
    for i in range(9):
        a(f'v_writelane_b32 {v(vt)}, {s(S_ST+2*i)}, {i}')
    a('s_lshl_b32 s3, s2, 3')
    a(f's_add_u32 s3, s3, {s(S_WAVE)}')
    a('s_lshl_b32 s3, s3, 6')
    a(f's_add_u32 s3, s3, {hex(WS_STAMP)}')
    a(f'v_lshlrev_b32 {v(vt+1)}, 2, {v(VL)}')
    a('s_mov_b64 exec, 0xffff')
    a(f'buffer_store_dword {v(vt)}, {v(vt+1)}, {s(SWS,4)}, s3 offen')
    a('s_mov_b64 exec, -1')
```

```python
from common import *

XSLOT = 16384
WBASE = 65536


def k0_of(a, mode):
    if mode == 0:
        a(f's_mov_b32 {s(S_K0)}, 0')
        return
    a(f's_and_b32 s3, {s(S_RB)}, 3')
    a('s_lshl_b32 s3, s3, 2')
    a('s_lshr_b32 s3, 0x8530, s3')
    a('s_and_b32 s3, s3, 15')
    if mode == 2:
        a('s_mov_b32 s3, 0')
    if mode != 3:
        a(f's_add_u32 s3, s3, {s(S_CT)}')
    a('s_mul_i32 s4, s3, 205')
    a('s_lshr_b32 s4, s4, 11')
    a('s_mul_i32 s4, s4, 10')
    a(f's_sub_u32 {s(S_K0)}, s3, s4')


def g1_loader(a, kmode, go):
    vb = 4
    t = vb + 16
    S_XK, S_WK, S_M, S_XO, S_IT, S_L = SL, SL + 1, SL + 2, SL + 3, SL + 4, SL + 5
    k0_of(a, kmode)
    a(f's_and_b32 {s(S_L)}, {s(S_WAVE)}, 1')
    a(f'v_lshrrev_b32 {v(t)}, 3, {v(VL)}')
    a(f'v_lshrrev_b32 {v(t+1)}, 4, {v(VL)}')
    a(f'v_xor_b32 {v(t+1)}, {v(t+1)}, {v(VL)}')
    a(f'v_and_b32 {v(t+1)}, 7, {v(t+1)}')
    a(f's_lshl_b32 s3, {s(S_RB)}, 1')
    a(f's_add_u32 s3, s3, {s(S_L)}')
    a(f's_mul_i32 s3, s3, {128*1280}')
    a(f'v_mul_u32_u24 {v(t+2)}, 1280, {v(t)}')
    a(f'v_add_u32 {v(t+2)}, s3, {v(t+2)}')
    a(f'v_lshl_add_u32 {v(vb)}, {v(t+1)}, 4, {v(t+2)}')
    a(f'v_xor_b32 {v(t+3)}, 64, {v(vb)}')
    for i in range(1, 8):
        a(f'v_add_u32 {v(vb+i)}, {i*8*1280-(i&3)*1024}, {v(vb if i % 2 == 0 else t+3)}')
    a(f'v_lshrrev_b32 {v(t+1)}, 3, {v(VL)}')
    a(f'v_and_b32 {v(t+1)}, 2, {v(t+1)}')
    a(f'v_xor_b32 {v(t+1)}, {v(t+1)}, {v(VL)}')
    a(f'v_and_b32 {v(t+1)}, 7, {v(t+1)}')
    a(f'v_mul_u32_u24 {v(t+2)}, 3456, {v(t)}')
    a(f's_lshl_b32 s3, {s(S_CT)}, 7')
    a(f'v_add_u32 {v(t+2)}, s3, {v(t+2)}')
    a(f'v_lshl_add_u32 {v(vb+8)}, {v(t+1)}, 4, {v(t+2)}')
    a(f'v_xor_b32 {v(t+3)}, 64, {v(vb+8)}')
    for i in range(1, 8):
        a(f'v_add_u32 {v(vb+8+i)}, {i*8*3456-(i&3)*1024}, {v(vb+8 if i % 2 == 0 else t+3)}')
    a(f's_lshl_b32 {s(S_XK)}, {s(S_K0)}, 7')
    a(f's_mul_i32 {s(S_WK)}, {s(S_K0)}, {64*3456}')
    a(f's_lshl_b32 {s(S_M)}, {s(S_L)}, 13')
    go(a)
    a(f's_cmp_eq_u32 {s(S_L)}, 1')
    a(f's_cselect_b32 {s(P_WG)}, {s(P_WU)}, {s(P_WG)}')
    a(f's_cselect_b32 {s(P_WG+1)}, {s(P_WU+1)}, {s(P_WG+1)}')
    srd(a, SW, P_WG, W_BYTES)
    srd(a, SX, P_X, X_BYTES)

    def ix(hs):
        if hs & 1:
            a(f's_add_u32 {s(S_XO)}, {s(S_XK)}, {64*1280}')
            so = S_XO
        else:
            so = S_XK
        for g in range(2):
            a(f's_add_u32 m0, {s(S_M)}, {(hs%4)*XSLOT+g*4096}')
            for i in range(4):
                a(f'buffer_load_dwordx4 {v(vb+4*g+i)}, {s(SX,4)}, {s(so)} offen offset:{i*1024} lds')
        if hs & 1:
            a(f's_add_u32 {s(S_XK)}, {s(S_XK)}, 128')
            a(f's_cmp_eq_u32 {s(S_XK)}, 1280')
            a(f's_cselect_b32 {s(S_XK)}, 0, {s(S_XK)}')

    def iw(b):
        for g in range(2):
            a(f's_add_u32 m0, {s(S_M)}, {WBASE+(b%2)*XSLOT+g*4096}')
            for i in range(4):
                a(f'buffer_load_dwordx4 {v(vb+8+4*g+i)}, {s(SW,4)}, {s(S_WK)} offen offset:{i*1024} lds')
        a(f's_add_u32 {s(S_WK)}, {s(S_WK)}, {64*3456}')
        a(f's_cmp_eq_u32 {s(S_WK)}, {640*3456}')
        a(f's_cselect_b32 {s(S_WK)}, 0, {s(S_WK)}')
    iw(0); ix(0); ix(1); iw(1); ix(2); ix(3)
    srd(a, SWS, P_WS, WS_SIZE)
    a(f's_mov_b32 {s(S_IT)}, 4')
    TA, UA = t, t + 1
    a(f'v_lshlrev_b32 {v(TA)}, 4, {v(VL)}')
    a(f'v_lshrrev_b32 {v(UA)}, 2, {v(VL)}')
    a(f'v_mul_u32_u24 {v(UA)}, 40960, {v(UA)}')
    a(f'v_and_b32 {v(t+2)}, 3, {v(VL)}')
    a(f'v_lshl_add_u32 {v(UA)}, {v(t+2)}, 4, {v(UA)}')
    a('s_waitcnt vmcnt(32)')
    a('s_barrier')
    stamp(a, 1)
    a.label('ld_loop')
    for j in range(4):
        a(f's_waitcnt vmcnt({24 if j & 1 else 16})')
        a('s_barrier')
        if j % 2 == 0:
            iw(j // 2)
        ix(j)
    stamp_it(a, S_IT, (4, 3, 2, 1), 3)
    a(f's_sub_u32 {s(S_IT)}, {s(S_IT)}, 1')
    a(f's_cmp_lg_u32 {s(S_IT)}, 0')
    a('s_cbranch_scc1 ld_loop')
    a(f's_lshl2_add_u32 m0, {s(S_L)}, {O_R19}')
    oob_flag(a, vb, SX)
    if not OPT.get('x'):
        fw_load(a)
    a('s_waitcnt vmcnt(17)')
    a('s_barrier')
    stamp(a, 2)
    if OPT.get('x'):
        return
    a(f's_cmp_ge_u32 {s(S_IDX)}, 25')
    a('s_cbranch_scc1 g2pre')
    a(f's_lshl1_add_u32 s5, {s(S_IDX)}, {s(S_L)}')
    a(f's_mul_i32 s3, {s(S_X)}, 80')
    a('s_add_u32 s3, s3, s5')
    a('s_lshl_b32 s3, s3, 6')
    a(f's_add_u32 {s(S_WK)}, s3, {hex(WS_UT + 30*64)}')
    priv_wait(a, S_PW, [f's_cmp_eq_u32 {s(S_PW)}, 1'])
    stamp(a, 3, 2)
    a(f's_mul_i32 s3, {s(S_L)}, {GT_SIZE}')
    a(f's_add_u32 m0, s3, {G_GT}')
    for i in range(4):
        a(f'buffer_load_dwordx4 {v(UA)}, {s(SWS,4)}, {s(S_WK)} offen offset:{i*1024} sc1 lds')
        if i < 3:
            a(f's_add_u32 {s(S_WK)}, {s(S_WK)}, {16*40960-1024}')
    a('s_add_u32 m0, m0, 4096')
    a('s_mov_b64 exec, 0x3fffffff')
    a(f'buffer_load_dwordx4 {v(TA)}, {s(SWS,4)}, {s(SWS+2)} offen lds')
    a(f's_lshl2_add_u32 m0, {s(S_L)}, {O_TAB}')
    oob_flag(a, TA, SWS)


class G1Regs:
    def __init__(self, base):
        b = base
        self.xa = b; b += 2
        self.wa = b; b += 2
        self.ha = b; b += 1
        self.fa = b; b += 1
        self.f = b; b += 1
        self.t = b; b += 3
        b = (b + 3) // 4 * 4
        self.B = b; b += 32
        self.A = [b, b + 32]; b += 64
        self.acc = b; b += 128
        self.end = b


def g1_addr(a, R):
    t = R.t
    a(f'v_and_b32 {v(t)}, 15, {v(VL)}')
    a(f'v_lshrrev_b32 {v(t+1)}, 4, {v(VL)}')
    a(f'v_lshrrev_b32 {v(t+2)}, 1, {v(t)}')
    a(f'v_xor_b32 {v(t+2)}, {v(t+1)}, {v(t+2)}')
    a(f'v_lshlrev_b32 {v(t+2)}, 4, {v(t+2)}')
    a(f'v_lshl_add_u32 {v(t)}, {v(t)}, 7, {v(t+2)}')
    a(f's_and_b32 s3, {s(S_WAVE)}, 1')
    a('s_lshl_b32 s3, s3, 13')
    a(f'v_add_u32 {v(R.xa)}, s3, {v(t)}')
    a(f'v_xor_b32 {v(R.xa+1)}, 64, {v(R.xa)}')
    a(f'v_bfe_u32 {v(t+2)}, {v(VL)}, 2, 2')
    a(f'v_lshl_add_u32 {v(t)}, {v(t+1)}, 3, {v(t+2)}')
    a(f'v_lshlrev_b32 {v(t)}, 7, {v(t)}')
    a(f'v_bfe_u32 {v(t+2)}, {v(VL)}, 3, 2')
    a(f's_and_b32 s3, {s(S_WAVE)}, 2')
    a(f'v_xor_b32 {v(t+2)}, s3, {v(t+2)}')
    a(f'v_lshl_add_u32 {v(t)}, {v(t+2)}, 5, {v(t)}')
    a(f'v_and_b32 {v(t+2)}, 3, {v(VL)}')
    a(f'v_lshl_add_u32 {v(t)}, {v(t+2)}, 3, {v(t)}')
    a(f'v_add_u32 {v(R.wa)}, {WBASE}, {v(t)}')
    a(f'v_xor_b32 {v(R.wa+1)}, 32, {v(R.wa)}')
    a(f'v_lshlrev_b32 {v(R.ha)}, 4, {v(VL)}')
    a(f's_and_b32 s3, {s(S_WAVE)}, 1')
    a(f's_lshl2_add_u32 s3, s3, {FB}')
    a(f'v_mov_b32 {v(R.fa)}, s3')
    for i in range(0, 128, 2):
        a(f'v_mov_b64 {v(R.acc+i,2)}, 0')


def g1_main(a, R):
    S_IT = SL

    def xr(n):
        hs, r = n >> 2, n & 3
        return [f'ds_read_b128 {v(R.B+8*(n%4)+4*k,4)}, {v(R.xa+k)} offset:{(hs%4)*XSLOT+r*2048}' for k in range(2)]

    def wr(b):
        return [f'ds_read_b64_tr_b16 {v(R.A[b&1]+8*m+4*k+2*h,2)}, {v(R.wa+(m&1))} offset:{(b%2)*XSLOT+(m>>1)*8192+k*4096+h*512}'
                for m in range(4) for k in range(2) for h in range(2)]

    def rdf(h):
        return f'ds_read_b32 {v(R.f)}, {v(R.fa)} offset:{O_R19-FB}'
    a(f's_lshl2_add_u32 m0, {s(S_WAVE)}, {O_FREE}')
    a('s_mov_b64 vcc, 0')
    a('s_waitcnt lgkmcnt(0)')
    a('s_barrier')
    stamp(a, 1)
    w0 = wr(0)
    a.extend(w0[:4] + xr(0) + w0[4:12])
    a('s_waitcnt lgkmcnt(8)')
    a.extend(w0[12:] + xr(1))
    a(f's_mov_b32 {s(S_IT)}, 5')
    a('s_waitcnt lgkmcnt(0)')
    pend = []
    body = Asm()
    for n in range(32):
        o = body if n >= 16 else Asm()
        hs, r = n >> 2, n & 3
        h = hs & 3
        b = hs >> 1
        rg = 4 * (hs & 1) + r
        rd = [(x, ('x', n + 2)) for x in xr(n + 2)]
        ph = (n - 2) % 8
        bn = (n - 2) // 8 + 1
        if ph < 4:
            rd += [(x, ('w', bn)) for x in wr(bn)[4 * ph:4 * ph + 4]]
        if r == 1 and h == 1:
            rd = [(rdf(h), ('f', hs))] + rd
        if r == 2:
            cnt = 0
        else:
            need = [i for i, tg in enumerate(pend) if tg == ('x', n) or tg == ('w', b)]
            cnt = len(pend) - 1 - max(need) if need else None
        if cnt is not None and pend:
            o(f's_waitcnt lgkmcnt({cnt})')
            pend = pend[len(pend) - cnt:] if cnt else []
        k = 0
        for m in range(4):
            acc = R.acc + 64 * (m >> 1) + 8 * rg + 4 * (m & 1)
            for kk in range(2):
                o(f'v_mfma_f32_16x16x32_bf16 {v(acc,4)}, {v(R.A[b&1]+8*m+4*kk,4)}, {v(R.B+8*(n%4)+4*kk,4)}, {v(acc,4)}')
                if r == 2 and k == 0:
                    if h:
                        o('s_cbranch_vccnz g1_alt1' if h == 1 else f's_cbranch_vccnz g1_back{h}')
                    o('s_barrier')
                    if h:
                        o.label(f'g1_back{h}')
                if rd:
                    x, tg = rd.pop(0); o(x); pend.append(tg)
                if n == 31 and k == 4:
                    o(f's_cmp_eq_u32 {s(S_IT)}, 2')
                    o('s_cselect_b64 vcc, -1, 0')
                if n == 31 and k == 5:
                    o(f's_sub_u32 {s(S_IT)}, {s(S_IT)}, 1')
                if n == 31 and k == 6:
                    o(f's_cmp_lg_u32 {s(S_IT)}, 0')
                k += 1
        assert not rd
    a.label('g1_loop')
    a.extend(body)
    a('s_cbranch_scc1 g1_loop')
    a('s_branch g1_epi')
    for h in (1,):
        a.label(f'g1_alt{h}')
        a(f'v_cmp_ne_u32 vcc, 0, {v(R.f)}')
        a(f's_cbranch_vccz g1_ok{h}')
        spin(a, [rdf(h)], 's_waitcnt lgkmcnt(0)', [f'v_cmp_ne_u32 vcc, 0, {v(R.f)}'])
        a.label(f'g1_ok{h}')
        a('s_mov_b64 vcc, -1')
        a(f's_branch g1_back{h}')
    a.label('g1_epi')


def g1_epilogue(a, R):
    a(f's_and_b32 s3, {s(S_WAVE)}, 1')
    a(f's_lshl_b32 s4, {s(S_RB)}, 1')
    a('s_add_u32 s3, s3, s4')
    a('s_mul_i32 s3, s3, 108')
    a(f's_lshl_b32 s4, {s(S_CT)}, 1')
    a('s_add_u32 s3, s3, s4')
    a(f's_lshr_b32 s4, {s(S_WAVE)}, 1')
    a('s_add_u32 s3, s3, s4')
    a('s_lshl_b32 s4, s3, 12')
    a(f's_add_u32 s5, s4, {54*4096}')
    a('s_waitcnt lgkmcnt(0)')
    for rg in range(8):
        g, u = R.acc + 8 * rg, R.acc + 64 + 8 * rg
        p = R.A[0] + 4 * rg
        for i in range(0, 8, 2):
            a(f'v_pk_mul_f32 {v(g+i,2)}, {v(g+i,2)}, {v(u+i,2)}')
        for i in range(4):
            a(f'v_cvt_pk_bf16_f32 {v(p+i)}, {v(g+2*i)}, {v(g+2*i+1)}')
        a(f'buffer_store_dwordx4 {v(p,4)}, {v(R.ha)}, {s(SWS,4)}, {s(4+(rg>>2))} offen offset:{(rg&3)*1024} sc1')
    oob_flag(a, R.ha, SWS)
    stamp(a, 2)
    a(f's_and_b32 s3, {s(S_WAVE)}, 1')
    a(f's_lshl1_add_u32 s3, {s(S_RB)}, s3')
    a('s_lshl_b32 s3, s3, 5')
    a(f's_add_u32 s3, s3, {s(S_CT)}')
    a('s_lshl_b32 s3, s3, 5')
    a(f's_and_b32 s4, {s(S_WAVE)}, 2')
    a('s_add_u32 s3, s3, s4')
    a(f's_lshl1_add_u32 {s(SL)}, s3, {hex(FL_H)}')


def h_flag(a, vt):
    a('s_waitcnt vmcnt(0)')
    flag_store(a, vt, s(SL))
```

```python
from common import *

HA, LA = 2, 3
ACC, HB, WB = 4, 84, 132
PT = 254
FA = 212
PW = 230
TAILWAIT = [10]
AT_G = 80 * 144
S_N, S_WB, S_WE, S_WO, S_HB, S_HE, S_HO = 68, 69, 70, 71, 72, 73, 74


def adv(a, o, b, e, step):
    a(f's_add_u32 {s(o)}, {s(o)}, {step}')
    a(f's_cmp_eq_u32 {s(o)}, {s(e)}')
    a(f's_cselect_b32 {s(o)}, {s(b)}, {s(o)}')


def g2_pre(a):
    a(f's_and_b32 s5, {s(S_WAVE)}, 3')
    a(f's_lshr_b32 s3, s5, 1')
    a(f's_sub_u32 {s(S_N)}, 14, s3')
    a(f's_mul_i32 {s(SL)}, s5, 14')
    a('s_cmp_eq_u32 s5, 3')
    a(f's_subb_u32 {s(SL)}, {s(SL)}, 0')
    a(f's_mul_i32 s3, {s(S_CG)}, 13')
    a('s_lshr_b32 s3, s3, 3')
    a(f's_and_b32 s4, {s(S_R2)}, 3')
    a(f's_mul_i32 s4, s4, {s(S_N)}')
    a('s_lshr_b32 s4, s4, 2')
    a('s_add_u32 s3, s3, s4')
    a(f's_sub_u32 s4, s3, {s(S_N)}')
    a('s_cselect_b32 s3, s3, s4')
    a(f's_mul_i32 s4, {s(S_CG)}, 54')
    a(f's_add_u32 s4, s4, {s(SL)}')
    a('s_mul_i32 s4, s4, 5120')
    a(f's_add_u32 {s(S_WB)}, s4, {hex(WS_WP)}')
    a(f's_mul_i32 s4, {s(S_N)}, 5120')
    a(f's_add_u32 {s(S_WE)}, {s(S_WB)}, s4')
    a('s_mul_i32 s4, s3, 5120')
    a(f's_add_u32 {s(S_WO)}, {s(S_WB)}, s4')
    a(f's_mul_i32 s4, {s(S_R2)}, 54')
    a(f's_add_u32 s4, s4, {s(SL)}')
    a(f's_lshl_b32 {s(S_HB)}, s4, 12')
    a(f's_lshl_b32 s4, {s(S_N)}, 12')
    a(f's_add_u32 {s(S_HE)}, {s(S_HB)}, s4')
    a('s_lshl_b32 s4, s3, 12')
    a(f's_add_u32 {s(S_HO)}, {s(S_HB)}, s4')
    a(f'v_lshlrev_b32 {v(HA)}, 4, {v(VL)}')
    a(f's_mul_i32 {s(SL+1)}, s5, {PART}')
    a(f'v_add_u32 {v(LA)}, {s(SL+1)}, {v(HA)}')
    fw_wait(a)
    stamp(a, 4, 2)
    npre = OPT.get('npre', 6)

    def wsets(j0, j1):
        for j in range(j0, j1):
            a(f's_add_u32 s3, {s(S_WO)}, 4096')
            for cb in range(5):
                a(wload(j, cb))
            adv(a, S_WO, S_WB, S_WE, 5120)
    wsets(0, npre)
    a(f's_cmp_lg_u32 {s(S_SIDE)}, 0')
    a('s_cbranch_scc1 g2_free')
    oob_wait(a, PT, O_FREE, 4, 1)
    a.label('g2_free')
    wsets(npre, 6)
    a.label('g2_dma')
    a(f's_mov_b32 m0, {s(SL+1)}')
    a(f's_mov_b32 {s(SL+2)}, 4')
    a.label('g2_dma_l')
    a(f's_add_u32 s3, {s(S_WO)}, 1024')
    a(f'buffer_load_dwordx4 {v(HA)}, {s(SWS,4)}, {s(S_WO)} offen sc1 lds')
    a('s_add_u32 m0, m0, 1024')
    adv(a, S_WO, S_WB, S_WE, 5120)
    for i in range(4):
        a(f'buffer_load_dwordx4 {v(HA)}, {s(SWS,4)}, s3 offen offset:{i*1024} sc1 lds')
    a('s_add_u32 m0, m0, 4096')
    a(f's_sub_u32 {s(SL+2)}, {s(SL+2)}, 1')
    a(f's_cmp_lg_u32 {s(SL+2)}, 0')
    a('s_cbranch_scc1 g2_dma_l')
    stamp(a, 5, 2)
    srd(a, SO, P_OUT, X_BYTES)
    a(f'v_min_u32 {v(0)}, 6, {v(VL)}')
    a(f'v_lshlrev_b32 {v(0)}, 6, {v(0)}')
    a(f's_lshr_b32 s3, {s(SL)}, 1')
    a(f's_lshr_b32 s4, {s(S_R2)}, 1')
    a('s_lshl_b32 s4, s4, 5')
    a('s_add_u32 s3, s3, s4')
    a('s_lshl_b32 s3, s3, 6')
    a(f's_add_u32 s3, s3, {hex(FL_H)}')
    spin(a, [f'buffer_load_dwordx2 {v(PT,2)}, {v(0)}, {s(SWS,4)}, s3 offen sc1'], 's_waitcnt vmcnt(0)',
         [f'v_and_b32 {v(PT)}, {v(PT)}, {v(PT+1)}', f'v_cmp_ne_u32 vcc, 1, {v(PT)}'], 1)
    stamp(a, 6, 2)


def wset(j):
    return WB + 20 * (j if j < 6 else 4 + (j & 1) if j < 10 else j - 10)


def wload(j, cb):
    so = 's3' if cb == 4 else s(S_WO)
    return f'buffer_load_dwordx4 {v(wset(j)+4*cb,4)}, {v(HA)}, {s(SWS,4)}, {so} offen offset:{(cb&3)*1024} sc1'


def hload(j, rb):
    return f'buffer_load_dwordx4 {v(HB+16*(j%3)+4*rb,4)}, {v(HA)}, {s(SWS,4)}, {s(S_HO)} offen offset:{rb*1024} sc1'


def part_addr(a):
    t = PW + 1
    a(f'v_and_b32 {v(PW)}, 15, {v(VL)}')
    a(f'v_lshrrev_b32 {v(t)}, 2, {v(VL)}')
    a(f'v_lshrrev_b32 {v(t+1)}, 4, {v(VL)}')
    a(f'v_xor_b32 {v(t)}, {v(t)}, {v(t+1)}')
    a(f'v_and_b32 {v(t)}, 3, {v(t)}')
    a(f'v_mul_u32_u24 {v(PW)}, 320, {v(PW)}')
    a(f'v_lshl_add_u32 {v(PW)}, {v(t)}, 4, {v(PW)}')
    a(f'v_add_u32 {v(PW)}, {s(SL+1)}, {v(PW)}')


def g2_main(a):
    q = []
    for j in range(3):
        for rb in range(4):
            a(hload(j, rb)); q.append(('h', j, rb))
        adv(a, S_HO, S_HB, S_HE, 4096)
    wl = [(j, cb) for j in range(10, 14) for cb in range(5)]
    x = Asm()
    part_addr(x)
    final_addr(x, S_WAVE, FA)
    extra = list(x.lines)

    def pw(rb, cb):
        return f'ds_write_b128 {v(PW)}, {v(ACC+4*(rb*5+cb),4)} offset:{rb*16*320+cb*64}'
    for j in range(14):
        if j == 13:
            a(f's_cmp_eq_u32 {s(S_N)}, 13')
            a('s_cbranch_scc1 g2_short')
        fill = []
        if 1 <= j <= 10:
            for _ in range(2):
                wj, cb = wl.pop(0)
                L = []
                if cb == 0:
                    if wj == 13:
                        L += [f's_cmp_eq_u32 {s(S_N)}, 13', f's_cselect_b32 {s(S_WO)}, {hex(WS_SIZE)}, {s(S_WO)}']
                    L += [f's_add_u32 s3, {s(S_WO)}, 4096']
                L.append(wload(wj, cb))
                if cb == 4 and wj < 13:
                    y = Asm(); adv(y, S_WO, S_WB, S_WE, 5120); L += y.lines
                fill.append((L, ('w', wj, cb)))
        if 5 <= j <= 8:
            for cb in range(5):
                fill.append(([f'ds_read_b128 {v(wset(j+1)+4*cb,4)}, {v(LA)} offset:{(j-5)*5120+cb*1024}'], None))
        if j in (10, 11, 12):
            n = (len(extra) + 12 - j) // (13 - j)
            for _ in range(n):
                fill.append(([extra.pop(0)], None))
        if j == TAILWAIT[0]:
            y = Asm(); y(f's_and_b32 s4, {s(S_WAVE)}, 3'); y(f's_lshl2_add_u32 s4, s4, {M_TAIL}'); lds_flag_set(y, PT, 's4')
            fill.append((y.lines, None))
        if j == 10:
            a(f's_cmp_eq_u32 {s(S_N)}, 13')
            a(f's_cselect_b32 {s(S_HO)}, {hex(WS_SIZE)}, {s(S_HO)}')
        if 6 <= j <= 9:
            a('s_waitcnt lgkmcnt(0)')
        for rb in range(4):
            need = [i for i, tg in enumerate(q) if tg == ('h', j, rb) or tg[0:2] == ('w', j)]
            if need:
                cnt = len(q) - 1 - max(need)
                a(f's_waitcnt vmcnt({cnt})')
                q = q[len(q) - cnt:] if cnt else []
            for cb in range(5):
                acc = ACC + 4 * (rb * 5 + cb)
                cc = '0' if j == 0 else v(acc, 4)
                a(f'v_mfma_f32_16x16x32_bf16 {v(acc,4)}, {v(wset(j)+4*cb,4)}, {v(HB+16*(j%3)+4*rb,4)}, {cc}')
                if j == 13:
                    if rb:
                        a(pw(rb - 1, cb))
                elif fill:
                    L, tg = fill.pop(0)
                    a.extend(L)
                    if tg:
                        q.append(tg)
            if j + 3 < 14:
                a(hload(j + 3, rb)); q.append(('h', j + 3, rb))
        assert not fill
        if j + 3 < 13:
            adv(a, S_HO, S_HB, S_HE, 4096)
    assert not extra and not wl
    a('s_branch g2_last')
    a.label('g2_short')
    for rb in range(3):
        for cb in range(5):
            a(pw(rb, cb))
    a.label('g2_last')
    for cb in range(5):
        a(pw(3, cb))


def final_addr(a, s_item, f):
    pa, pb, ta, ga, oa, idx, rb = f, f + 1, f + 2, f + 3, f + 4, f + 5, f + 6
    a(f'v_lshrrev_b32 {v(idx)}, 4, {v(VL)}')
    a(f's_lshl_b32 s4, {s(s_item)}, 2')
    a(f'v_add_u32 {v(idx)}, s4, {v(idx)}')
    a(f'v_mul_u32_u24 {v(rb)}, 205, {v(idx)}')
    a(f'v_lshrrev_b32 {v(rb)}, 11, {v(rb)}')
    a(f'v_mul_u32_u24 {v(pa)}, 10, {v(rb)}')
    a(f'v_sub_u32 {v(idx)}, {v(idx)}, {v(pa)}')
    a(f'v_and_b32 {v(ga)}, 15, {v(VL)}')
    a(f'v_lshl_add_u32 {v(ga)}, {v(rb)}, 4, {v(ga)}')
    a(f'v_bfe_u32 {v(ta)}, {v(VL)}, 2, 2')
    a(f'v_lshlrev_b32 {v(pb)}, 1, {v(idx)}')
    a(f'v_xor_b32 {v(pb)}, {v(pb)}, {v(ta)}')
    a(f'v_mul_u32_u24 {v(pa)}, 320, {v(ga)}')
    a(f'v_lshl_add_u32 {v(pa)}, {v(pb)}, 4, {v(pa)}')
    a(f'v_xor_b32 {v(pb)}, 16, {v(pa)}')
    a(f's_mul_i32 s4, {s(S_R2)}, {64*1280}')
    a(f'v_mul_u32_u24 {v(oa)}, 1280, {v(ga)}')
    a(f'v_lshl_add_u32 {v(oa)}, {v(idx)}, 4, {v(oa)}')
    a(f'v_add_u32 {v(oa)}, s4, {v(oa)}')
    a(f's_mul_i32 s4, {s(S_CG)}, 160')
    a(f'v_add_u32 {v(oa)}, s4, {v(oa)}')
    a(f's_add_u32 s4, {s(S_AT)}, {AT_G}')
    a(f'v_lshl_add_u32 {v(ga)}, {v(ga)}, 2, s4')
    a(f'v_lshl_add_u32 {v(ta)}, {v(idx)}, 3, {v(ta)}')
    a(f'v_mul_u32_u24 {v(ta)}, 144, {v(ta)}')
    a(f'v_lshl_add_u32 {v(ta)}, {v(rb)}, 5, {v(ta)}')
    a(f'v_and_b32 {v(rb)}, 3, {v(VL)}')
    a(f'v_lshl_add_u32 {v(ta)}, {v(rb)}, 3, {v(ta)}')
    a(f'v_add_u32 {v(ta)}, {s(S_AT)}, {v(ta)}')


def final_reads(a, f, d):
    for w in range(4):
        for h in range(2):
            a(f'ds_read_b128 {v(d+8*w+4*h,4)}, {v(f+h)} offset:{w*PART}')
    a(f'ds_read_b64_tr_b16 {v(d+32,2)}, {v(f+2)}')
    a(f'ds_read_b64_tr_b16 {v(d+34,2)}, {v(f+2)} offset:{4*144}')
    a(f'ds_read_b32 {v(d+36)}, {v(f+3)}')


def final_math(a, f, d):
    A, g = d + 32, d + 36
    a('s_waitcnt lgkmcnt(7)')
    for i in range(0, 8, 2):
        a(f'v_pk_add_f32 {v(d+i,2)}, {v(d+i,2)}, {v(d+8+i,2)}')
    a('s_waitcnt lgkmcnt(3)')
    for i in range(0, 8, 2):
        a(f'v_pk_add_f32 {v(d+16+i,2)}, {v(d+16+i,2)}, {v(d+24+i,2)}')
    for i in range(0, 8, 2):
        a(f'v_pk_add_f32 {v(d+i,2)}, {v(d+i,2)}, {v(d+16+i,2)}')
    a('s_waitcnt lgkmcnt(0)')
    for i in range(8):
        if i & 1:
            a(f'v_and_b32 {v(d+8+i)}, 0xffff0000, {v(A+i//2)}')
        else:
            a(f'v_lshlrev_b32 {v(d+8+i)}, 16, {v(A+i//2)}')
    for i in range(0, 8, 2):
        a(f'v_pk_add_f32 {v(d+8+i,2)}, {v(d+8+i,2)}, {v(d+i,2)} neg_lo:[0,1] neg_hi:[0,1]')
    for i in range(0, 8, 2):
        a(f'v_pk_fma_f32 {v(d+i,2)}, {v(g,2)}, {v(d+8+i,2)}, {v(d+i,2)} op_sel_hi:[0,1,1]')
    for i in range(4):
        a(f'v_cvt_pk_bf16_f32 {v(d+16+i)}, {v(d+2*i)}, {v(d+2*i+1)}')
    a(f'buffer_store_dwordx4 {v(d+16,4)}, {v(f+4)}, {s(SO,4)}, 0 offen')


def atload(a):
    t, ad, at = 4, 7, 8
    srd(a, SO, P_OUT, X_BYTES)
    final_addr(a, S_WAVE, FA)
    a(f's_add_u32 {s(SL)}, {s(S_WAVE)}, 8')
    final_addr(a, SL, FA + 8)
    a(f's_lshl_b32 s3, {s(S_WAVE)}, 6')
    a(f'v_add_u32 {v(t)}, s3, {v(VL)}')
    a(f'v_lshrrev_b32 {v(t+1)}, 3, {v(t)}')
    a(f'v_and_b32 {v(t)}, 7, {v(t)}')
    a(f'v_lshlrev_b32 {v(t)}, 4, {v(t)}')
    a(f'v_mul_u32_u24 {v(ad)}, 144, {v(t+1)}')
    a(f'v_add3_u32 {v(ad)}, {v(ad)}, {v(t)}, {s(S_AT)}')
    a(f'v_lshl_add_u32 {v(t)}, {v(t+1)}, 12, {v(t)}')
    priv_wait(a, S_PW, [f's_cmp_eq_u32 {s(S_PW+2)}, 1'], 2)
    stamp(a, 5, 2)
    lds_flag_wait(a, PT, M_TAIL, 2, 4)
    stamp(a, 6, 2)
    a(f's_mul_i32 s4, {s(S_CG)}, {80*4096}')
    a(f's_lshl_b32 s3, {s(S_R2)}, 7')
    a('s_add_u32 s4, s4, s3')
    a(f's_add_u32 s4, s4, {hex(WS_AT)}')
    for k in range(2):
        a(f'buffer_load_dwordx4 {v(at+4*k,4)}, {v(t)}, {s(SWS,4)}, s4 offen sc1')
        a(f's_add_u32 s4, s4, {32*4096}')
    a(f's_cmp_ge_u32 {s(S_WAVE)}, 2')
    a('s_cbranch_scc1 at_g')
    a(f'buffer_load_dwordx4 {v(at+8,4)}, {v(t)}, {s(SWS,4)}, s4 offen sc1')
    a('s_branch at_w')
    a.label('at_g')
    a(f's_cmp_eq_u32 {s(S_WAVE)}, 2')
    a('s_cbranch_scc1 at_w')
    a(f's_mul_i32 s3, {s(S_R2)}, 2560')
    a(f's_add_u32 s3, s3, {hex(WS_G)}')
    a(f'v_lshlrev_b32 {v(t+1)}, 2, {v(VL)}')
    g = at + 8
    for k in range(10):
        a(f'buffer_load_dword {v(g+k)}, {v(t+1)}, {s(SWS,4)}, s3 offen offset:{256*k} sc1')
    a.label('at_w')
    a(f's_cmp_eq_u32 {s(S_SIDE)}, 0')
    a('s_cbranch_scc1 at_free')
    lds_flag_wait(a, PT, M_CDONE + 16, 2, 2)
    a.label('at_free')
    a('s_waitcnt vmcnt(0)')
    a(f'ds_write_b128 {v(ad)}, {v(at,4)}')
    a(f'ds_write_b128 {v(ad)}, {v(at+4,4)} offset:{32*144}')
    a(f's_cmp_ge_u32 {s(S_WAVE)}, 2')
    a('s_cbranch_scc1 at_gw')
    a(f'ds_write_b128 {v(ad)}, {v(at+8,4)} offset:{64*144}')
    a('s_branch final')
    a.label('at_gw')
    a(f's_cmp_eq_u32 {s(S_WAVE)}, 2')
    a('s_cbranch_scc1 final')
    a(f'v_pk_add_f32 {v(g,2)}, {v(g,2)}, {v(g+2,2)}')
    a(f'v_pk_add_f32 {v(g+4,2)}, {v(g+4,2)}, {v(g+6,2)}')
    a(f'v_pk_add_f32 {v(g,2)}, {v(g,2)}, {v(g+8,2)}')
    a(f's_add_u32 s3, {s(S_AT)}, {AT_G}')
    a(f'v_pk_add_f32 {v(g,2)}, {v(g,2)}, {v(g+4,2)}')
    a(f'v_add_u32 {v(t+1)}, s3, {v(t+1)}')
    a(f'v_add_f32 {v(g)}, {v(g)}, {v(g+1)}')
    a(f'v_mul_f32 {v(g)}, 0xbfb8aa3b, {v(g)}')
    a(f'v_exp_f32 {v(g)}, {v(g)}')
    a(f'v_add_f32 {v(g)}, 1.0, {v(g)}')
    a(f'v_rcp_f32 {v(g)}, {v(g)}')
    a('s_nop 0')
    a(f'ds_write_b32 {v(t+1)}, {v(g)}')


def final(a):
    a.label('final')
    stamp(a, 7, 2)
    a('s_waitcnt lgkmcnt(0)')
    a('s_barrier')
    final_reads(a, FA, 4)
    final_math(a, FA, 4)
    a(f's_cmp_ge_u32 {s(S_WAVE)}, 2')
    a('s_cbranch_scc1 fin_done')
    final_reads(a, FA + 8, 44)
    final_math(a, FA + 8, 44)
    a.label('fin_done')
```

```python
from common import *
from g1 import k0_of, XSLOT
from ssm import kexpand, kpart_add, STG_SIZE


def helper(a, kmode, go):
    S_WV, S_UO, S_GO, S_FU, S_WO, S_PO = SL, SL + 1, SL + 2, SL + 3, SL + 4, SL + 5
    S_FWW, S_B, S_T = 68, 69, 70
    t, RA, OA, XA, HA, WA, V, Z = 4, 8, 12, 13, 15, 16, 17, 22
    GW, D, XB, AC, ZR = 24, 32, 64, 96, 112

    class K:
        acc, bf, af, t, dsk, ha = 96, 32, 112, 64, 23, HA
    k0_of(a, kmode)
    a(f's_and_b32 {s(S_WV)}, {s(S_WAVE)}, 1')
    a(f's_cmp_ge_u32 {s(S_CT)}, 10')
    a('s_cselect_b32 s5, 1, 0')
    a(f's_lshl1_add_u32 s3, {s(S_RB)}, {s(S_WV)}')
    a('s_lshl1_add_u32 s3, s3, s5')
    a(f's_lshl1_add_u32 s5, s5, {s(S_WV)}')
    a(f's_lshl_b32 {s(S_B)}, s5, 13')
    a(f's_mul_i32 s4, s3, {2*40960}')
    a(f's_sub_u32 {s(S_UO)}, {hex(WS_UT + 63*40960)}, s4')
    a(f's_lshl_b32 s4, {s(S_K0)}, 12')
    a(f's_add_u32 {s(S_UO)}, {s(S_UO)}, s4')
    a('s_mul_i32 s4, s3, 10')
    a(f's_add_u32 s4, s4, {s(S_K0)}')
    a('s_lshl_b32 s4, s4, 8')
    a(f's_add_u32 {s(S_GO)}, s4, {hex(WS_G)}')
    a(f's_lshl3_add_u32 s4, {s(S_K0)}, {s(S_RB)}')
    a('s_lshl_b32 s4, s4, 5')
    a('s_and_b32 s3, s3, 3')
    a('s_add_u32 s4, s4, s3')
    a(f's_lshl2_add_u32 {s(S_FU)}, s4, {hex(FL_U)}')
    a(f'v_lshrrev_b32 {v(t+1)}, 4, {v(VL)}')
    a(f'v_lshlrev_b32 {v(t+3)}, 4, {v(t+1)}')
    a(f'v_lshlrev_b32 {v(HA)}, 4, {v(VL)}')
    go(a)
    srd(a, SO, P_GW, 1280)
    srd(a, SWS, P_WS, WS_SIZE)
    a(f's_lshl_b32 s3, {s(S_K0)}, 7')
    for k in range(2):
        a(f'buffer_load_dwordx4 {v(GW+4*k,4)}, {v(t+3)}, {s(SO,4)}, s3 offen offset:{64*k}')
    a(f's_mul_i32 s3, {s(S_X)}, 80')
    a(f's_lshl1_add_u32 s3, {s(S_IDX)}, s3')
    a(f's_add_u32 s3, s3, {s(S_WV)}')
    a('s_min_u32 s3, s3, 609')
    a('s_lshl_b32 s3, s3, 1')
    a(f'v_mov_b32 {v(K.dsk)}, s3')
    a(f'global_load_ushort {v(K.dsk)}, {v(K.dsk)}, {s(P_DSK,2)} offset:60')
    a(f's_cmp_lg_u32 {s(S_IDX)}, 26')
    a('s_cbranch_scc1 hp_noz')
    a(f's_cmp_lg_u32 {s(S_WV)}, 1')
    a('s_cbranch_scc1 hp_noz')
    for i in range(0, 4, 2):
        a(f'v_mov_b64 {v(ZR+i,2)}, 0')
    a(f's_mul_i32 s3, {s(S_X)}, {FL_PART}')
    a(f's_add_u32 s3, s3, {hex(WS_FL)}')
    for i in range(FL_PART // 1024):
        a(f'buffer_store_dwordx4 {v(ZR,4)}, {v(HA)}, {s(SWS,4)}, s3 offen offset:{(i&3)*1024} sc1')
        if i & 3 == 3:
            a('s_add_u32 s3, s3, 4096')
    a.label('hp_noz')
    srd(a, SW, P_WD, W_BYTES)
    a(f'v_bfe_u32 {v(t)}, {v(VL)}, 3, 1')
    a(f'v_bfe_u32 {v(t+2)}, {v(VL)}, 4, 1')
    a(f'v_lshl_add_u32 {v(t)}, {v(t+2)}, 2, {v(t)}')
    a(f'v_bfe_u32 {v(t+2)}, {v(VL)}, 1, 1')
    a(f'v_xor_b32 {v(t)}, {v(t)}, {v(t+2)}')
    a(f'v_xor_b32 {v(t)}, 7, {v(t)}')
    a(f'v_lshlrev_b32 {v(t)}, 4, {v(t)}')
    a(f'v_and_b32 {v(t+2)}, 1, {v(VL)}')
    a(f'v_lshl_add_u32 {v(t)}, {v(t+2)}, 3, {v(t)}')
    a(f'v_bfe_u32 {v(t+2)}, {v(VL)}, 2, 2')
    a(f'v_lshl_add_u32 {v(t+2)}, {v(t+1)}, 3, {v(t+2)}')
    a(f'v_sub_u32 {v(t+2)}, 27, {v(t+2)}')
    a(f'v_lshl_add_u32 {v(t)}, {v(t+2)}, 7, {v(t)}')
    a(f'v_add_u32 {v(RA)}, {s(S_B)}, {v(t)}')
    for i in range(1, 4):
        a(f'v_xor_b32 {v(RA+i)}, {32*i}, {v(RA)}')
    a(f'v_and_b32 {v(t)}, 15, {v(VL)}')
    a(f'v_lshl_add_u32 {v(OA)}, {v(t)}, 6, {v(t+3)}')
    a(f'v_lshrrev_b32 {v(t+2)}, 1, {v(t)}')
    a(f'v_xor_b32 {v(t+2)}, {v(t+1)}, {v(t+2)}')
    a(f'v_lshlrev_b32 {v(t+2)}, 4, {v(t+2)}')
    a(f'v_lshl_add_u32 {v(t)}, {v(t)}, 7, {v(t+2)}')
    a(f'v_add_u32 {v(XA)}, {s(S_B)}, {v(t)}')
    a(f'v_xor_b32 {v(XA+1)}, 64, {v(XA)}')
    a(f's_mul_i32 s3, {s(S_X)}, 27')
    a(f's_add_u32 s3, s3, {s(S_IDX)}')
    a('s_lshr_b32 s4, s3, 2')
    a('s_and_b32 s3, s3, 3')
    a(f's_lshl1_add_u32 s3, s3, {s(S_WV)}')
    a(f's_mul_i32 {s(S_WO)}, s4, 40960')
    a('s_mul_i32 s5, s3, 160')
    a(f's_add_u32 {s(S_WO)}, {s(S_WO)}, s5')
    a('s_mul_i32 s5, s3, 54')
    a('s_add_u32 s5, s5, s4')
    a('s_mul_i32 s5, s5, 5120')
    a(f's_add_u32 {s(S_PO)}, s5, {hex(WS_WP)}')
    a(f's_lshl_b32 {s(S_FWW)}, s3, 7')
    a(f's_add_u32 {s(S_FWW)}, {s(S_FWW)}, s4')
    for first, step in ((14, 18), (28, 18), (41, 19)):
        a(f's_cmp_ge_u32 s4, {first}')
        a(f's_cselect_b32 s5, {step}, 0')
        a(f's_add_u32 {s(S_FWW)}, {s(S_FWW)}, s5')
    a(f's_lshl2_add_u32 {s(S_FWW)}, {s(S_FWW)}, {hex(FL_W)}')
    for i in range(5):
        a(f'v_add_u32 {v(t)}, {64*i}, {v(VL)}')
        a(f'v_mul_u32_u24 {v(t+2)}, 205, {v(t)}')
        a(f'v_lshrrev_b32 {v(t+2)}, 11, {v(t+2)}')
        a(f'v_mul_u32_u24 {v(t+2)}, {1280-160}, {v(t+2)}')
        a(f'v_lshl_add_u32 {v(V+i)}, {v(t)}, 4, {v(t+2)}')
        if i & 3:
            a(f'v_subrev_u32 {v(V+i)}, {1024*(i&3)}, {v(V+i)}')
    a(f'v_lshrrev_b32 {v(t)}, 2, {v(VL)}')
    a(f'v_mul_u32_u24 {v(t)}, 160, {v(t)}')
    a(f'v_and_b32 {v(t+2)}, 3, {v(VL)}')
    a(f'v_lshl_add_u32 {v(t)}, {v(t+2)}, 3, {v(t)}')
    a(f's_lshl_b32 s3, {s(S_WV)}, 13')
    a(f's_add_u32 {s(S_B)}, s3, {G_MB}')
    a(f'v_add_u32 {v(WA)}, {s(S_B)}, {v(t)}')

    def z_raise():
        a('s_waitcnt vmcnt(0)')
        a(f's_cmp_lg_u32 {s(S_IDX)}, 26')
        a('s_cbranch_scc1 hp_noz2')
        a(f's_cmp_lg_u32 {s(S_WV)}, 1')
        a('s_cbranch_scc1 hp_noz2')
        a(f's_lshl_b32 s3, {s(S_X)}, 2')
        a(f'v_mov_b32 {v(t)}, s3')
        a(f'v_mov_b32 {v(t+1)}, 1')
        a('s_mov_b64 exec, 1')
        a(f'global_store_dword {v(t)}, {v(t+1)}, {s(P_DBG,2)} sc1')
        a('s_mov_b64 exec, -1')
        a.label('hp_noz2')

    def ut():
        a(f's_cmp_lt_u32 {s(S_CT)}, 10')
        a('s_cbranch_scc1 hp_ut')
        a('s_barrier')
        a.label('hp_ut')
        a(f's_cmp_ge_u32 {s(S_CT)}, 20')
        a('s_cbranch_scc1 hp_nout')
        for sb in range(2):
            for cg in range(4):
                for h in range(2):
                    a(f'ds_read_b64_tr_b16 {v(D+16*sb+4*cg+2*h,2)}, {v(RA+(cg^h))} offset:{4096*sb+512*(1-h)}')
            if sb == 0:
                a('s_waitcnt lgkmcnt(4)')
        a(f's_sub_u32 s3, {s(S_UO)}, 40960')
        n = 12
        for sb in range(2):
            for cg in range(4):
                j = 4 * sb + cg
                a(f'ds_read_b128 {v(XB+4*j,4)}, {v(XA+(j&1))} offset:{(j>>1)*2048}')
                done = 2 * j + 2
                a(f's_waitcnt lgkmcnt({min(15, 16 - done + j + 1)})')
                a(f'buffer_store_dwordx4 {v(D+4*j,4)}, {v(OA)}, {s(SWS,4)}, {"s3" if sb else s(S_UO)} offen offset:{cg*1024} sc1')
        a('s_waitcnt lgkmcnt(0)')
        for k in range(2):
            for rg in range(4):
                a(f'v_mfma_f32_16x16x32_bf16 {v(AC+4*rg,4)}, {v(GW+4*k,4)}, {v(XB+8*rg+4*k,4)}, {v(AC+4*rg,4) if k else 0}')
        a(f's_cmp_ge_u32 {s(S_CT)}, 10')
        a('s_cbranch_scc1 hp_nout')
        a('s_barrier')
        a.label('hp_nout')

    def gate():
        a(f's_cmp_ge_u32 {s(S_CT)}, 20')
        a('s_cbranch_scc1 hp_nog')
        a(f'v_lshlrev_b32 {v(t)}, 2, {v(VL)}')
        for rg in range(1, 4):
            a(f'v_cmp_le_u32 vcc, {16*rg}, {v(VL)}')
            a(f'v_cndmask_b32 {v(AC)}, {v(AC)}, {v(AC+4*rg)}, vcc')
        a(f'buffer_store_dword {v(AC)}, {v(t)}, {s(SWS,4)}, {s(S_GO)} offen sc1')
        a.label('hp_nog')

    def k_fin():
        a(f's_cmp_ge_u32 {s(S_IDX)}, 25')
        a('s_cbranch_scc1 hp_nok')
        a(f's_mul_i32 s3, {s(S_WV)}, {2*STG_SIZE}')
        a(f's_add_u32 s3, s3, {G_STG}')
        a(f'v_add_u32 {v(K.t+1)}, s3, {v(HA)}')
        for i in range(4):
            a(f'ds_read_b128 {v(K.acc+4*i,4)}, {v(K.t+1)} offset:{1024*i}')
        a(f's_add_u32 s3, s3, {STG_SIZE}')
        kpart_add(a, K, 's3')
        a(f's_mul_i32 s3, {s(S_WV)}, {RA_STRIDE}')
        a(f's_add_u32 {s(S_T)}, s3, {G_TT}')
        kexpand(a, K, S_T)
        a.label('hp_nok')
        stamp(a, 6, 3)

    def z_issue():
        a.extend(z_load(Z))

    def u_flag():
        a('s_waitcnt vmcnt(0)')
        z_check(a, Z)
        a(f's_cmp_ge_u32 {s(S_CT)}, 20')
        a('s_cbranch_scc1 hp_nouf')
        flag_store(a, t, s(S_FU))
        a.label('hp_nouf')
        stamp(a, 3, 3)

    def w_dma():
        a(f's_mov_b32 m0, {s(S_B)}')
        for i in range(4):
            a(f'buffer_load_dwordx4 {v(V+i)}, {s(SW,4)}, {s(S_WO)} offen offset:{i*1024} lds')
        a('s_add_u32 m0, m0, 4096')
        a(f'buffer_load_dwordx4 {v(V+4)}, {s(SW,4)}, {s(S_WO)} offen lds')

    def w_pack():
        a(f's_add_u32 s3, {s(S_PO)}, 4096')
        a('s_waitcnt vmcnt(0)')
        stamp(a, 4, 3)
        for cb in range(5):
            for h in range(2):
                a(f'ds_read_b64_tr_b16 {v(D+4*cb+2*h,2)}, {v(WA)} offset:{h*2560+cb*32}')
        for cb in range(5):
            a(f's_waitcnt lgkmcnt({8-2*cb})')
            a(f'buffer_store_dwordx4 {v(D+4*cb,4)}, {v(HA)}, {s(SWS,4)}, {"s3" if cb == 4 else s(S_PO)} offen offset:{(cb&3)*1024} sc1')

    def w_flag():
        a('s_waitcnt vmcnt(0)')
        flag_store(a, t, s(S_FWW))
        stamp(a, 5, 3)
    plan = [(0, z_raise), (0, ut), (2, gate), (OPT.get('kf', 2), k_fin), (OPT.get('zl', 2), z_issue), (OPT.get('uf', 4), u_flag), (OPT.get('wd', 8), w_dma),
            (OPT.get('wr', 10), w_pack), (OPT.get('wf', 13), w_flag), (OPT.get('fw', 16), lambda: fw_load(a))]
    plan.sort(key=lambda x: x[0])
    for i in range(18):
        if i != 1:
            a('s_barrier')
        if i == 0:
            stamp(a, 1)
        for j, f in plan:
            if j == i:
                f()
    stamp(a, 2)
    oob_wait(a, t, O_R19, 2, 1)
```

```python
from common import *

LOG2E = 0x3fb8aa3b
INV2PI = 0x3e22f983
STG_ROW = 272
STG_SIZE = 32 * STG_ROW

ROW_OF = {256: [8, 14], 258: [9], 260: [10, 12], 262: [13], 512: [16], 516: [17], 768: [20], 772: [21],
          1024: [24], 1280: [28], 1536: [25], 1792: [29], 2048: [26]}
for i in range(8):
    ROW_OF[i] = [i]
A_PLAN = [(1, 0, 'z'), (256, 0, 'zz'), (2, 1, 'z'), (512, 256, 'zz'), (3, 2, 'z'), (768, 512, 'zz'), (4, 3, 'z'), (1024, 768, 'zz'),
          (5, 4, 'z'), (1280, 1024, 'zz'), (6, 5, 'z'), (1536, 1280, 'zz'), (7, 6, 'z'), (260, 4, 'zz'), (1792, 1536, 'zz'),
          (516, 260, 'zz'), (2048, 1792, 'zz'), (772, 516, 'zz'), (258, 2, 'zz'), (262, 6, 'zz')]
S_SEL = 77


class KgenRegs:
    acc, bf, af, c = 16, 32, 64, 64
    t, z, y1, y2, zz = 96, 104, 106, 108, 110
    par, ldt, dsk, pk, ra, ha = 240, 246, 247, 248, 252, 253


def kgen_loads(a, R):
    t = R.t
    a(f's_lshl_b32 s3, {s(S_CH)}, 8')
    a(f'v_lshl_add_u32 {v(t)}, {v(VL)}, 2, s3')
    a(f's_lshl_b32 s3, {s(S_CH)}, 1')
    a(f'v_mov_b32 {v(t+1)}, s3')
    a(f'global_load_ushort {v(R.ldt)}, {v(t+1)}, {s(P_LDT,2)}')
    for i in range(6):
        a(f'global_load_dword {v(R.par+i)}, {v(t)}, {s(P_PAR+2*i,2)}')
    a(f'global_load_ushort {v(R.dsk)}, {v(t+1)}, {s(P_DSK,2)}')


def kgen_addr(a, R):
    t = R.t
    a(f'v_and_b32 {v(t+4)}, 31, {v(VL)}')
    a(f'v_lshrrev_b32 {v(t+5)}, 5, {v(VL)}')
    a(f'v_mul_u32_u24 {v(R.ra)}, {STG_ROW}, {v(t+4)}')
    a(f'v_lshl_add_u32 {v(R.ra)}, {v(t+5)}, 4, {v(R.ra)}')
    a(f'v_add_u32 {v(R.ra)}, m0, {v(R.ra)}')
    a(f'v_lshlrev_b32 {v(R.ha)}, 4, {v(VL)}')
    for i in range(0, 16, 2):
        a(f'v_mov_b64 {v(R.acc+i,2)}, 0')


def kgen_pre(a, R):
    t = R.t
    a(f'v_perm_b32 {v(t)}, {v(R.par)}, {v(R.par)}, {s(S_SEL)}')
    a(f'v_perm_b32 {v(t+1)}, {v(R.par+1)}, {v(R.par+1)}, {s(S_SEL)}')
    a(f'v_mul_f32 {v(t)}, {v(R.ldt)}, {v(t)}')
    a(f'v_mul_f32 {v(t+1)}, {v(R.ldt)}, {v(t+1)}')
    a(f'v_mul_f32 {v(t)}, {hex(LOG2E)}, {v(t)}')
    a(f'v_mul_f32 {v(t+1)}, {hex(INV2PI)}, {v(t+1)}')
    a(f'v_mul_f32 {v(t+2)}, 0x41000000, {v(t)}')
    a(f'v_mul_f32 {v(t+3)}, 0x41000000, {v(t+1)}')
    a(f'v_fract_f32 {v(t+3)}, {v(t+3)}')
    a(f'v_exp_f32 {v(t+2)}, {v(t+2)}')
    a(f'v_cos_f32 {v(R.y1)}, {v(t+3)}')
    a(f'v_sin_f32 {v(R.y1+1)}, {v(t+3)}')
    a(f'v_fract_f32 {v(t+1)}, {v(t+1)}')
    a(f'v_exp_f32 {v(t)}, {v(t)}')
    a(f'v_cos_f32 {v(R.z)}, {v(t+1)}')
    a(f'v_sin_f32 {v(R.z+1)}, {v(t+1)}')
    a(f'v_pk_mul_f32 {v(R.y1,2)}, {v(R.y1,2)}, {v(t+2,2)} op_sel_hi:[1,0]')
    a(f'v_pk_mul_f32 {v(R.z,2)}, {v(R.z,2)}, {v(t,2)} op_sel_hi:[1,0]')


def chain(a, R, E, neg):
    I = []
    for n, (d, x, m, rows) in enumerate(E):
        p = R.pk + (n & 3)
        I.append(([f'v_pk_mul_f32 {v(d,2)}, {v(x,2)}, {v(m,2)} op_sel:[0,0] op_sel_hi:[0,1]'] if x is not None else [],
                  [f'v_pk_fma_f32 {v(d,2)}, {v(x,2)}, {v(m,2)}, {v(d,2)} op_sel:[1,1,0] op_sel_hi:[1,0,1] neg_lo:[0,1,0]'] if x is not None else [],
                  [f'v_cvt_pk_bf16_f32 {v(p)}, {v(d)}, {"-" if neg else ""}{v(d+1)}'] if rows else [],
                  [f'ds_write_addtid_b32 {v(p)} offset:{r*STG_ROW}' for r in rows]))
    for n in range(0, len(I), 2):
        for k in range(4):
            a.extend(I[n][k] + I[n + 1][k])


def kgen(a, R, s_n):
    t = R.t
    a(f'v_lshlrev_b32 {v(R.ldt)}, 16, {v(R.ldt)}')
    a(f'v_mul_f32 {v(R.ldt)}, {hex(LOG2E)}, {v(R.ldt)}')
    a(f'v_exp_f32 {v(R.ldt)}, {v(R.ldt)}')
    a(f'v_mov_b32 {v(t+4)}, 0x3f80')
    a(f'v_cvt_pk_bf16_f32 {v(R.ldt)}, {v(R.ldt)}, {v(R.ldt)}')
    a(f'v_and_b32 {v(R.ldt)}, 0xffff0000, {v(R.ldt)}')
    kgen_pre(a, R)
    a.label('kg_loop')
    c = R.c
    a(f'ds_write_addtid_b32 {v(t+4)}')
    Y = {1: R.y1, 2: R.y2, 32: R.zz}
    E = [(R.y2, R.y1, R.y1, [2]), (R.y1, None, None, [1])]
    for j in range(3, 33):
        Y.setdefault(j, c + 2 * (j % 4))
        E.append((Y[j], Y[j - 2], R.y2, [j] if j < 32 else []))
    chain(a, R, E, False)
    for m in range(8):
        a(f'ds_read_b128 {v(R.bf+4*m,4)}, {v(R.ra)} offset:{32*m}')
    for i in range(4):
        a(f'v_perm_b32 {v(t+i)}, {v(R.par+2+i)}, {v(R.par+2+i)}, {s(S_SEL)}')
    a(f'v_pk_mul_f32 {v(t,2)}, {v(t,2)}, {v(R.ldt,2)} op_sel_hi:[1,0]')
    a(f's_add_u32 {s(S_SEL)}, {s(S_SEL)}, 0x2020000')
    X = {0: c}
    free = [c + 2 * i for i in range(1, 16)]
    M = {'z': R.z, 'zz': R.zz}
    E = [(c, t, t + 2, [0]), (c, None, None, [])]
    for n in range(0, len(A_PLAN), 2):
        for d, x, m in A_PLAN[n:n + 2]:
            X[d] = free.pop(0)
            E.append((X[d], X[x], M[m], ROW_OF[d]))
        later = {x for d, x, m in A_PLAN[n + 2:]}
        for k in [k for k in X if k not in later]:
            free.append(X.pop(k))
    chain(a, R, E, True)
    for m in range(8):
        a(f'ds_read_b128 {v(R.af+4*m,4)}, {v(R.ra)} offset:{32*m}')
    a(f's_sub_u32 {s(s_n)}, {s(s_n)}, 1')
    a(f's_cmp_eq_u32 {s(s_n)}, 0')
    a('s_cbranch_scc1 kg_mm')
    kgen_pre(a, R)
    a.label('kg_mm')
    for m in range(8):
        a(f's_waitcnt lgkmcnt({7-m})')
        a(f'v_mfma_f32_32x32x16_bf16 {v(R.acc,16)}, {v(R.af+4*m,4)}, {v(R.bf+4*m,4)}, {v(R.acc,16)}')
    a('s_cbranch_scc0 kg_loop')


def kpart_write(a, R):
    a(f'v_add_u32 {v(R.t)}, m0, {v(R.ha)}')
    for i in range(4):
        a(f'ds_write_b128 {v(R.t)}, {v(R.acc+4*i,4)} offset:{1024*i}')


def kpart_add(a, R, s_base):
    a(f'v_add_u32 {v(R.t)}, {s_base}, {v(R.ha)}')
    for i in range(4):
        a(f'ds_read_b128 {v(R.bf+4*i,4)}, {v(R.t)} offset:{1024*i}')
    for i in range(4):
        a(f's_waitcnt lgkmcnt({3-i})')
        for k in (0, 2):
            a(f'v_pk_add_f32 {v(R.acc+4*i+k,2)}, {v(R.acc+4*i+k,2)}, {v(R.bf+4*i+k,2)}')


def kexpand(a, R, s_tt):
    t = R.t; A = R.acc
    w, e = R.bf, R.bf + 16
    a(f'v_lshlrev_b32 {v(R.dsk)}, 16, {v(R.dsk)}')
    a(f'v_cmp_eq_u32 vcc, 0, {v(VL)}')
    a(f'v_cndmask_b32 {v(t+4)}, 0, {v(R.dsk)}, vcc')
    a(f'v_and_b32 {v(t+5)}, 1, {v(VL)}')
    a(f'v_cmp_eq_u32 vcc, 0, {v(t+5)}')
    a(f'v_mov_b32 {v(t+7)}, 0')
    a(f'v_add_f32 {v(A)}, {v(A)}, {v(t+4)}')
    for d, x, y in ((A + 7, A + 6, A + 8), (A + 10, A + 8, A + 12), (A + 11, A + 12, A + 13), (A + 15, A + 13, A + 14)):
        a(f'v_mov_b32_dpp {v(d)}, {v(y)} wave_rol:1 row_mask:0xf bank_mask:0xf')
        a(f'v_mov_b32_dpp {v(d)}, {v(x)} wave_shl:1 row_mask:0xf bank_mask:0xf')
    a(f'v_mov_b32_dpp {v(A+6)}, {v(A+7)} quad_perm:[0,1,2,3] row_mask:0xc bank_mask:0xf')
    for d, x, y in ((0, 0, 1), (1, 2, 3), (2, 4, 4), (4, 8, 8), (5, 8, 9), (6, 9, 9), (7, 10, 10), (3, 5, 6)):
        a(f'v_cvt_pk_bf16_f32 {v(w+d)}, {v(A+x)}, {v(A+y)}')
    for i, (k0, k8) in enumerate(((A + 12, A + 11), (A + 13, A + 15))):
        o = w + 8 + 4 * i
        a(f'v_cndmask_b32 {v(t+6)}, {v(k8)}, {v(k0)}, vcc')
        a(f'v_cvt_pk_bf16_f32 {v(o)}, {v(k0)}, {v(k0)}')
        a(f'v_cvt_pk_bf16_f32 {v(o+3)}, {v(k8)}, {v(k8)}')
        a(f'v_cvt_pk_bf16_f32 {v(o+2)}, {v(t+6)}, {v(k8)}')
        a(f'v_mov_b32 {v(o+1)}, {v(o)}')
    a(f'v_permlane32_swap_b32 {v(w)}, {v(w+2)}')
    a(f'v_permlane32_swap_b32 {v(w+1)}, {v(w+3)}')
    for i in range(4):
        u = w + 4 * i
        if i:
            a(f'v_mov_b32_dpp {v(t+7)}, {v(u-1)} wave_ror:1 row_mask:0xf bank_mask:0xf')
        a(f'v_mov_b32_dpp {v(t+7)}, {v(u+3)} wave_shr:1 row_mask:0xf bank_mask:0xf')
        o = e + 4 * i
        for k in (3, 2, 1):
            a(f'v_alignbit_b32 {v(o+k)}, {v(u+k)}, {v(u+k-1)}, 16')
        a(f'v_alignbit_b32 {v(o)}, {v(u)}, {v(t+7)}, 16')
    for i in (0, 2):
        a(f'v_mov_b64 {v(R.af+i,2)}, 0')
    a(f'v_lshrrev_b32 {v(t)}, 1, {v(VL)}')
    a(f'v_mul_u32_u24 {v(t)}, {T_COPY}, {v(t)}')
    a(f'v_lshl_add_u32 {v(t)}, {v(t+5)}, 4, {v(t)}')
    a(f'v_add_u32 {v(t+1)}, {s(s_tt)}, {v(R.ha)}')
    a(f'v_add_u32 {v(t)}, {s(s_tt)}, {v(t)}')
    for i in range(4):
        a(f'ds_write_b128 {v(t+1)}, {v(w+4*i,4)} offset:{32+1024*i}')
        a(f'ds_write_b128 {v(t+1)}, {v(e+4*i,4)} offset:{T_COPY+32+1024*i}')
    a('s_mov_b64 exec, 15')
    a(f'ds_write_b128 {v(t)}, {v(R.af,4)}')
    a('s_mov_b64 exec, -1')


def side_tail(a, R):
    t, U = R.t, 112
    srd(a, SW, P_WD, W_BYTES)
    a(f's_mul_i32 s3, {s(S_X)}, 27')
    a('s_lshr_b32 s3, s3, 2')
    a('s_mul_i32 s3, s3, 5')
    a(f's_sub_u32 s4, {s(S_IDX)}, 27')
    a('s_lshl3_add_u32 s3, s4, s3')
    a(f's_add_u32 s3, s3, {s(S_WAVE)}')
    a('s_lshl_b32 s3, s3, 13')
    a(f'v_lshlrev_b32 {v(t+2)}, 7, {v(VL)}')
    if not OPT.get('nopf'):
        a(f'buffer_load_dword {v(U+16)}, {v(t+2)}, {s(SW,4)}, s3 offen')
    a(f's_cmp_lt_u32 {s(S_WAVE)}, 4')
    a('s_cbranch_scc1 sd_exp')
    a(f's_cmp_lt_u32 {s(S_WAVE)}, 6')
    a('s_cbranch_scc1 sd_fin')
    kpart_write(a, R)
    a(f's_add_u32 s3, {s(S_KW)}, {M_KP}')
    lds_flag_set(a, t, 's3')
    a(f's_cmp_eq_u32 {s(S_WAVE)}, 6')
    a('s_cbranch_scc1 sd_done')
    spin(a, z_load(t), 's_waitcnt vmcnt(0)', [f'v_cmp_ne_u32 vcc, 1, {v(t)}'], 2)
    a(f's_mul_i32 s3, {s(S_X)}, 5')
    a('s_lshr_b32 s3, s3, 2')
    a('s_lshl_b32 s3, s3, 10')
    a(f's_add_u32 s3, s3, {hex(FL_U)}')
    a(f'v_lshrrev_b32 {v(t)}, 2, {v(VL)}')
    a(f'v_lshlrev_b32 {v(t)}, 5, {v(t)}')
    a(f'v_and_or_b32 {v(t)}, {v(VL)}, 3, {v(t)}')
    a(f'v_lshlrev_b32 {v(t)}, 2, {v(t)}')
    spin(a, [f'buffer_load_dword {v(t+1)}, {v(t)}, {s(SWS,4)}, s3 offen sc1'], 's_waitcnt vmcnt(0)', [f'v_cmp_ne_u32 vcc, 1, {v(t+1)}'], OPT.get('usl', 4))
    lds_flag_set(a, t, M_U)
    a(f's_sub_u32 s3, {s(S_IDX)}, 27')
    a('s_mul_i32 s3, s3, 5')
    a(f'v_add_u32 {v(t)}, s3, {v(VL)}')
    a(f'v_lshrrev_b32 {v(t+2)}, 2, {v(t)}')
    a(f'v_and_b32 {v(t)}, 3, {v(t)}')
    a(f'v_lshl_add_u32 {v(t)}, {v(t+2)}, 5, {v(t)}')
    a(f'v_lshlrev_b32 {v(t)}, 7, {v(t)}')
    a(f's_lshl_b32 s3, {s(S_X)}, 9')
    a(f's_add_u32 s3, s3, {hex(FL_P)}')
    a('s_mov_b64 exec, 31')
    a(f'buffer_store_dword {v(t+1)}, {v(t)}, {s(SWS,4)}, s3 offen sc1')
    a('s_mov_b64 exec, -1')
    a('s_branch sd_done')
    a.label('sd_fin')
    a(f's_add_u32 s3, {s(S_KW)}, {M_KP}')
    lds_flag_wait(a, t, 's3')
    a(f's_add_u32 s3, m0, {2*STG_SIZE}')
    kpart_add(a, R, 's3')
    a.label('sd_exp')
    kexpand(a, R, S_TT)
    a(f'v_lshrrev_b32 {v(t)}, 2, {v(VL)}')
    a(f'v_mul_u32_u24 {v(t)}, 40960, {v(t)}')
    a(f'v_and_b32 {v(t+1)}, 3, {v(VL)}')
    a(f'v_lshl_add_u32 {v(t)}, {v(t+1)}, 4, {v(t)}')
    a(f'v_add_u32 {v(t+2)}, {s(S_GT)}, {v(R.ha)}')
    a('s_mov_b64 exec, 0x3fffffff')
    a(f'ds_write_b128 {v(t+2)}, {v(R.af,4)} offset:4096')
    a('s_mov_b64 exec, -1')
    stamp(a, 5, 3)
    lds_flag_wait(a, t + 4, M_U, 1)
    stamp(a, 6, 3)
    a(f's_lshl_b32 s3, {s(S_CH)}, 6')
    a(f's_add_u32 s3, s3, {hex(WS_UT)}')
    for i in range(4):
        a(f'buffer_load_dwordx4 {v(U+4*i,4)}, {v(t)}, {s(SWS,4)}, s3 offen sc1')
        if i < 3:
            a(f's_add_u32 s3, s3, {16*40960}')
    for i in range(4):
        a(f's_waitcnt vmcnt({3-i})')
        a(f'ds_write_b128 {v(t+2)}, {v(U+4*i,4)} offset:{1024*i}')
    a.label('sd_done')


class ConvRegs:
    def __init__(self, base):
        b = base
        self.ta = b; b += 4
        self.ga = b; b += 1
        self.oa = b; b += 1
        self.t = b; b += 2
        b = (b + 3) // 4 * 4
        self.acc = b; b += 32
        self.T = [b, b + 32]; b += 64
        self.G = [b, b + 32]; b += 64
        self.end = b


def conv_addr(a, C, s_tt, s_gt, s_ch, vlane):
    t = C.t
    a(f'v_and_b32 {v(t)}, 15, {v(vlane)}')
    a(f'v_lshrrev_b32 {v(t+1)}, 4, {v(vlane)}')
    a(f'v_lshlrev_b32 {v(C.ga)}, 4, {v(t+1)}')
    a(f'v_lshlrev_b32 {v(C.oa)}, 5, {v(t)}')
    a(f'v_sub_u32 {v(C.ga)}, {v(C.ga)}, {v(C.oa)}')
    a(f'v_add_u32 {v(C.ga)}, 480, {v(C.ga)}')
    a(f'v_add_u32 {v(C.ga)}, {s(s_gt)}, {v(C.ga)}')
    a(f'v_and_b32 {v(C.ta)}, 1, {v(t+1)}')
    a(f'v_lshl_add_u32 {v(C.oa)}, {v(C.ta)}, 9, {v(C.oa)}')
    a(f'v_and_b32 {v(C.ta)}, 2, {v(t+1)}')
    a(f'v_lshl_add_u32 {v(C.oa)}, {v(C.ta)}, 3, {v(C.oa)}')
    a(f's_lshl_b32 s3, {s(s_ch)}, 12')
    a(f'v_add_u32 {v(C.oa)}, s3, {v(C.oa)}')
    a(f'v_lshrrev_b32 {v(C.ta)}, 1, {v(t)}')
    a(f'v_lshl_add_u32 {v(C.ta)}, {v(t+1)}, 2, {v(C.ta)}')
    a(f'v_lshlrev_b32 {v(C.ta)}, 2, {v(C.ta)}')
    a(f'v_and_b32 {v(t)}, 1, {v(t)}')
    a(f'v_mul_u32_u24 {v(t)}, {T_COPY}, {v(t)}')
    a(f'v_sub_u32 {v(C.ta)}, {v(C.ta)}, {v(t)}')
    a(f'v_add_u32 {v(C.ta)}, {T_COPY+4}, {v(C.ta)}')
    a(f'v_add_u32 {v(C.ta)}, {s(s_tt)}, {v(C.ta)}')
    for i in range(1, 4):
        a(f'v_add_u32 {v(C.ta+i)}, {1024*i}, {v(C.ta)}')


def conv_loads(C, m0, buf):
    L = []
    T, G = C.T[buf], C.G[buf]
    for i in range(8):
        L.append(f'ds_read_b128 {v(G+4*i,4)}, {v(C.ga)} offset:{2*(1760+32*m0-256*i)}')
        o = 16 * (m0 - 1) + 128 * (i & 1)
        L.append(f'ds_read2_b32 {v(T+4*i,2)}, {v(C.ta+(i>>1))} offset0:{o} offset1:{o+1}')
        L.append(f'ds_read2_b32 {v(T+4*i+2,2)}, {v(C.ta+(i>>1))} offset0:{o+2} offset1:{o+3}')
    return L


def conv_body(a, C):
    a(f'v_add_u32 {v(C.ga)}, {s(S_MOFF)}, {v(C.ga)}')
    for i in range(4):
        a(f'v_add_u32 {v(C.ta+i)}, {s(S_MOFF)}, {v(C.ta+i)}')
    a.extend(conv_loads(C, 1, 0))
    for i in range(0, 32, 2):
        a(f'v_mov_b64 {v(C.acc+i,2)}, 0')
    a.label('cv_loop')
    for buf in range(2):
        T, G = C.T[buf], C.G[buf]
        M = []
        for c in range(8):
            for mu in range(c + 1):
                M.append(f'v_mfma_f32_16x16x32_bf16 {v(C.acc+4*c,4)}, {v(T+4*mu,4)}, {v(G+4*(c-mu),4)}, {v(C.acc+4*c,4)}')
        F = conv_loads(C, 2 + buf, buf ^ 1)
        a('s_waitcnt lgkmcnt(0)')
        L = interleave(M, F, 0, 28)
        if buf:
            X = [f'v_add_u32 {v(r)}, 128, {v(r)}' for r in (C.ga, C.ta, C.ta + 1, C.ta + 2, C.ta + 3)]
            X += [f's_sub_u32 {s(S_NIT)}, {s(S_NIT)}, 1', f's_cmp_lg_u32 {s(S_NIT)}, 0']
            L = L[:-8] + interleave(L[-8:], X, 0, 7)
        a.extend(L)
    a('s_cbranch_scc1 cv_loop')
    a('s_waitcnt lgkmcnt(0)')


def conv_store(a, C):
    p = C.T[0]
    a(f's_mov_b32 s3, {hex(WS_AT)}')
    for c in range(8):
        A = C.acc + 4 * c
        a(f'v_cvt_pk_bf16_f32 {v(p+2*c)}, {v(A)}, {v(A+1)}')
        a(f'v_cvt_pk_bf16_f32 {v(p+2*c+1)}, {v(A+2)}, {v(A+3)}')
    for c in range(0, 8, 2):
        a(f'v_permlane16_swap_b32 {v(p+2*c)}, {v(p+2*c+2)}')
        a(f'v_permlane16_swap_b32 {v(p+2*c+1)}, {v(p+2*c+3)}')
    for c in range(0, 8, 2):
        a(f'buffer_store_dwordx4 {v(p+2*c,4)}, {v(C.oa)}, {s(SWS,4)}, s3 offen offset:{512*c} sc1')
```

```python
import sys
from build import *
import common
from g1 import *
from ssm import *
from helper import helper
from g2 import *


def go(a):
    a('s_waitcnt lgkmcnt(0)')
    stamp(a, 0)


def chan_setup(a):
    a(f's_cmp_lg_u32 {s(S_SIDE)}, 0')
    a('s_cbranch_scc1 ch_side')
    a(f's_lshr_b32 s3, {s(S_WAVE)}, 1')
    a(f's_mov_b32 {s(S_KW)}, s3')
    a(f's_lshl_b32 s4, {s(S_IDX)}, 1')
    a('s_add_u32 s4, s4, 30')
    a(f's_add_u32 {s(S_CH)}, s4, s3')
    a(f's_mul_i32 s4, s3, {RA_STRIDE}')
    a(f's_add_u32 {s(S_TT)}, s4, {G_TT}')
    a(f's_mul_i32 s4, s3, {GT_SIZE}')
    a(f's_add_u32 {s(S_GT)}, s4, {G_GT}')
    a('s_lshl_b32 s4, s3, 13')
    a(f's_add_u32 {s(S_MB)}, s4, {G_MB}')
    a(f's_and_b32 s3, {s(S_WAVE)}, 1')
    a(f's_add_u32 {s(S_MODE)}, s3, 1')
    a('s_branch ch_join')
    a.label('ch_side')
    a(f's_sub_u32 s3, {s(S_WAVE)}, 2')
    a(f's_cmp_ge_u32 {s(S_WAVE)}, 6')
    a(f's_cselect_b32 {s(S_KW)}, s3, {s(S_WAVE)}')
    a(f's_sub_u32 s3, {s(S_IDX)}, 27')
    a('s_mul_i32 s3, s3, 6')
    a(f's_add_u32 {s(S_CH)}, s3, {s(S_KW)}')
    a(f's_mul_i32 s4, {s(S_KW)}, {RA_STRIDE}')
    a(f's_add_u32 {s(S_TT)}, s4, {S_TT0}')
    a(f's_mul_i32 s4, {s(S_KW)}, {GT_SIZE}')
    a(f's_add_u32 {s(S_GT)}, s4, {S_GT0}')
    a(f's_and_b32 s3, {s(S_WAVE)}, 1')
    a(f's_mul_i32 s3, s3, {PART}')
    a(f's_add_u32 {s(S_MB)}, s3, 10240')
    a(f's_lshr_b32 s3, {s(S_WAVE)}, 1')
    a('s_max_u32 s3, s3, 1')
    a(f's_sub_u32 {s(S_MODE)}, s3, 1')
    a.label('ch_join')
    a(f's_mul_i32 s3, {s(S_X)}, 80')
    a(f's_add_u32 {s(S_CH)}, {s(S_CH)}, s3')
    a(f's_cmp_eq_u32 {s(S_MODE)}, 2')
    a(f's_cselect_b32 {s(S_MOFF)}, 256, 0')
    a(f's_cmp_eq_u32 {s(S_MODE)}, 0')
    a(f's_cselect_b32 {s(S_NIT)}, 4, 2')
    a(f's_lshl_b32 {s(S_KW)}, {s(S_KW)}, 2')


def flag_off(a, base):
    a(f's_add_u32 s3, {s(S_KW)}, {base}')
    return 's3'


def fused(kmode=1):
    a = Asm()
    a('s_cmp_ge_u32 s2, 256')
    a('s_cbranch_scc1 the_end')
    if OPT.get('hst'):
        a('s_memrealtime s[100:101]')
    a('s_load_dwordx16 s[16:31], s[0:1], 0')
    a('s_load_dwordx16 s[32:47], s[0:1], 64')
    a('s_load_dwordx2 s[48:49], s[0:1], 128')
    a('v_lshrrev_b32 v2, 6, v0')
    a(f'v_and_b32 {v(VL)}, 63, v0')
    a(f'v_readfirstlane_b32 {s(S_WAVE)}, v2')
    a('v_lshrrev_b32 v2, 8, v0')
    a('v_lshlrev_b32 v0, 2, v0')
    a(f'v_add_u32 v0, {FB}, v0')
    a('v_xor_b32 v2, 1, v2')
    a('ds_write_b32 v0, v2')
    stamp_init(a)
    a(f's_and_b32 {s(S_X)}, s2, 7')
    a(f's_lshr_b32 {s(S_IDX)}, s2, 3')
    a(f's_lshr_b32 {s(S_CG)}, {s(S_IDX)}, 2')
    a(f's_and_b32 s3, {s(S_IDX)}, 3')
    a(f's_lshl2_add_u32 {s(S_R2)}, {s(S_X)}, s3')
    a(f's_mov_b32 {s(S_TMO)}, 0x10000')
    a(f's_lshr_b32 s3, {s(S_X)}, 1')
    a('s_mul_i32 s3, s3, 27')
    a(f's_add_u32 s3, s3, {s(S_IDX)}')
    a(f's_lshr_b32 {s(S_CT)}, s3, 2')
    a('s_and_b32 s3, s3, 3')
    a(f's_and_b32 s4, {s(S_X)}, 1')
    a(f's_lshl2_add_u32 {s(S_RB)}, s4, s3')
    a(f's_lshl_b32 s3, {s(S_CG)}, 5')
    a(f's_add_u32 s3, s3, {s(S_R2)}')
    a('s_lshl_b32 s3, s3, 7')
    a(f's_add_u32 {s(S_PL)}, s3, {hex(FL_P)}')
    a(f's_mov_b32 {s(S_AT)}, {G_AT}')
    a(f's_cmp_ge_u32 {s(S_IDX)}, 27')
    a(f's_cselect_b32 {s(S_SIDE)}, 1, 0')
    a(f's_cselect_b32 {s(S_AT)}, {S_AT0}, {s(S_AT)}')
    a('s_cbranch_scc1 not_hp')
    a(f's_cmp_lt_u32 {s(S_WAVE)}, 6')
    a('s_cbranch_scc1 not_ld')
    g1_loader(a, kmode, go)
    a('s_branch x_end' if OPT.get('x') else 's_branch g2pre')

    a.label('not_ld')
    a(f's_cmp_lt_u32 {s(S_WAVE)}, 4')
    a('s_cbranch_scc1 not_hp')
    helper(a, kmode, go)
    a('s_branch x_end' if OPT.get('x') else 's_branch g2pre')

    a.label('not_hp')
    chan_setup(a)
    K = KgenRegs
    R = G1Regs(4)
    C = ConvRegs(4)
    a(f's_mul_i32 s3, {s(S_WAVE)}, {STG_SIZE}')
    a(f's_mul_i32 s4, {s(S_SIDE)}, {G_STG}')
    a(f's_add_u32 s3, s3, {G_STG}')
    a('s_sub_u32 m0, s3, s4')
    a(f's_cmp_eq_u32 {s(S_MODE)}, 2')
    a(f's_cselect_b32 s3, 0x2020000, 0')
    a(f's_add_u32 {s(S_SEL)}, s3, 0x1000c0c')
    a(f's_lshr_b32 {s(SL)}, {s(S_NIT)}, 1')
    go(a)
    a(f's_sub_u32 s3, {s(S_IDX)}, 25')
    a('s_cmp_lt_u32 s3, 2')
    a('s_cbranch_scc1 no_par')
    kgen_loads(a, K)
    a.label('no_par')
    srd(a, SWS, P_WS, WS_SIZE)
    kgen_addr(a, K)
    a(f's_cmp_eq_u32 {s(S_SIDE)}, 0')
    a('s_cbranch_scc1 g_addr')
    a('s_barrier')
    a('s_branch kg_go')
    a.label('g_addr')
    g1_addr(a, R)
    a(f's_cmp_ge_u32 {s(S_IDX)}, 25')
    a('s_cbranch_scc1 gemm')
    a.label('kg_go')
    a('s_waitcnt vmcnt(0)')
    stamp(a, 4, 3)
    kgen(a, K, SL)
    a(f's_cmp_eq_u32 {s(S_SIDE)}, 0')
    a('s_cbranch_scc1 g_part')
    stamp(a, 2)
    side_tail(a, K)
    conv_addr(a, C, S_TT, S_GT, S_CH, VL)
    a('s_waitcnt lgkmcnt(0)')
    a('s_barrier')
    stamp(a, 3)
    if OPT.get('x'):
        a('s_branch x_end')
    a('s_branch conv')

    a.label('g_part')
    kpart_write(a, K)
    a.label('gemm')
    stamp(a, 5, 3)
    if OPT.get('gprio'):
        a(f's_setprio {OPT["gprio"]}')
    g1_main(a, R)
    g1_epilogue(a, R)
    conv_addr(a, C, S_TT, S_GT, S_CH, VL)
    h_flag(a, C.t)
    stamp(a, 3)
    if OPT.get('x'):
        a('s_branch x_end')
    a(f's_cmp_ge_u32 {s(S_IDX)}, 25')
    a('s_cbranch_scc1 atload')
    a(f's_add_u32 s3, {s(S_KW)}, {O_TAB}')
    oob_wait(a, C.t, 's3', 1)
    a.label('conv')
    conv_body(a, C)
    stamp(a, 4, 2)
    a(f'v_lshlrev_b32 {v(C.ga)}, 4, {v(VL)}')
    a(f'v_add_u32 {v(C.ga)}, {s(S_MB)}, {v(C.ga)}')
    a(f's_cmp_eq_u32 {s(S_MODE)}, 0')
    a('s_cbranch_scc1 cv_store')
    a(f's_cmp_eq_u32 {s(S_MODE)}, 1')
    a('s_cbranch_scc1 cv_a')
    a(f's_cmp_eq_u32 {s(S_SIDE)}, 0')
    a('s_cbranch_scc1 cv_mb')
    fw_load(a)
    a.label('cv_mb')
    for c in range(8):
        a(f'ds_write_b128 {v(C.ga)}, {v(C.acc+4*c,4)} offset:{c*1024}')
    lds_flag_set(a, C.t, flag_off(a, M_MBF))
    a('s_branch cv_next')
    a.label('cv_a')
    lds_flag_wait(a, C.t, flag_off(a, M_MBF))
    for c in range(8):
        a(f'ds_read_b128 {v(C.G[0]+4*c,4)}, {v(C.ga)} offset:{c*1024}')
    lds_flag_set(a, C.t, flag_off(a, M_CDONE))
    for c in range(8):
        a(f's_waitcnt lgkmcnt({8-c})')
        for i in (0, 2):
            a(f'v_pk_add_f32 {v(C.acc+4*c+i,2)}, {v(C.acc+4*c+i,2)}, {v(C.G[0]+4*c+i,2)}')
    a(f's_cmp_eq_u32 {s(S_SIDE)}, 0')
    a('s_cbranch_scc1 cv_store')
    fw_load(a)
    a.label('cv_store')
    conv_store(a, C)
    a(f's_lshl_b32 s3, {s(S_X)}, 7')
    a(f's_add_u32 s3, s3, {hex(FL_CA)}')
    a(f'v_mov_b32 {v(C.t)}, 0')
    a(f'v_mov_b32 {v(C.t+1)}, 1')
    a('s_waitcnt vmcnt(0)')
    a('s_mov_b64 exec, 1')
    a(f'buffer_atomic_add {v(C.t+1)}, {v(C.t)}, {s(SWS,4)}, s3 offen sc0 sc1')
    a('s_mov_b64 exec, -1')
    a(f's_lshl_b32 s3, {s(S_X)}, 12')
    a(f's_add_u32 s3, s3, {hex(FL_P + 8)}')
    a(f'v_lshlrev_b32 {v(C.ga)}, 7, {v(VL)}')
    a(f'v_mov_b32 {v(C.oa)}, 1')
    a('s_waitcnt vmcnt(0)')
    a(f'v_readfirstlane_b32 s4, {v(C.t+1)}')
    a('s_cmp_lg_u32 s4, 79')
    a('s_cbranch_scc1 cv_next')
    a('s_mov_b32 exec_hi, 0')
    a(f'buffer_store_dword {v(C.oa)}, {v(C.ga)}, {s(SWS,4)}, s3 offen sc1')
    a('s_mov_b32 exec_hi, -1')
    a.label('cv_next')
    a(f's_cmp_ge_u32 {s(S_WAVE)}, 4')
    a('s_cbranch_scc1 g2pre')
    a.label('atload')
    atload(a)
    a('s_branch final')

    a.label('g2pre')
    g2_pre(a)
    g2_main(a)
    final(a)
    a.label('x_end')
    if not OPT.get('ldprof'):
        stamp(a, 8)
    stamp_dump(a, 2)
    if OPT.get('hst'):
        a('s_waitcnt vmcnt(0)')
        a('s_memrealtime s[98:99]')
        a('s_mul_i32 s3, s2, 1772')
        a('s_lshr_b32 s3, s3, 16')
        a('s_mul_i32 s5, s3, 37')
        a('s_cmp_lg_u32 s5, s2')
        a('s_cbranch_scc1 the_end')
        a(f's_cmp_lg_u32 {s(S_WAVE)}, 0')
        a('s_cbranch_scc1 the_end')
        a('s_lshl_b32 s3, s3, 3')
        a('s_add_u32 s3, s3, 8')
        a('s_waitcnt lgkmcnt(0)')
        a('v_mov_b32 v2, s100')
        a('v_mov_b32 v3, s98')
        a('v_mov_b32 v4, s3')
        a('s_mov_b64 exec, 1')
        a(f'global_store_dwordx2 v4, v[2:3], {s(P_DBG,2)}')
    a.label('the_end')
    a('s_endpgm')
    return a


if __name__ == '__main__':
    out = sys.argv[1]
    common.STAMPS[0] = 2 if 'st' in sys.argv[2:] else 3 if 'st1' in sys.argv[2:] else 0
    km = 1
    if 'cyc' in sys.argv[2:]:
        common.CLK[0] = 's_memtime'
    for o in sys.argv[2:]:
        if o.startswith('k='):
            km = int(o[2:])
        elif '=' in o:
            OPT[o.split('=')[0]] = int(o.split('=')[1])
    a = fused(km)
    write(out, [(NAME + '_kernel', 256, 512, LDS_SIZE)], [(NAME + '_kernel', a, 256)])
```
